```python
import torch

def _softmax(x, axis=-1):
    return torch.softmax(x, dim=axis)

def _gelu(x):
    return torch.nn.functional.gelu(x, approximate='tanh')

def _silu(x):
    return torch.nn.functional.silu(x)

def _sigmoid(x):
    return torch.sigmoid(x)

def _layernorm(x, axis=-1, eps=1e-05):
    m = x.mean(dim=axis, keepdim=True)
    v = x.var(dim=axis, keepdim=True, unbiased=False)
    return (x - m) / torch.sqrt(v + eps)

def _scatter_add(tgt, idx, src, axis=0):
    return tgt.clone().index_add_(axis, idx, src)

def _segment_sum(src, seg, n):
    out = torch.zeros((n,) + src.shape[1:], dtype=src.dtype)
    return out.index_add_(0, seg, src)

def _pad(x, pw):
    flat = tuple((v for pair in reversed(pw) for v in pair))
    return torch.nn.functional.pad(x, flat)
kernel_name = 'concat_heads__memory_aug_recurrent_mem_tr__ssm_conv_s4__prompt'

def setup_inputs():

    _w = lambda a: (lambda t: t.to(torch.bfloat16) if t.is_floating_point() else t)(torch.as_tensor(a))

    def _A_setup():
        B, S, Dm = (1, 2048, 1024)
        H, Dh = (32, 128)
        M, seg = (8, 32)
        seg = min(seg, S)
        S = S // seg * seg
        return {'x': _w((lambda *s: torch.randn(*s, dtype=torch.bfloat16) * 0.05)(B, S, Dm)), 'mem0': _w((lambda *s: torch.randn(*s, dtype=torch.bfloat16) * 0.4)(B, M, Dm)), 'Wq': _w((lambda *s: torch.randn(*s, dtype=torch.bfloat16) * 6.4)(Dm, H, Dh) * Dm ** (-0.5)), 'Wk': _w((lambda *s: torch.randn(*s, dtype=torch.bfloat16) * 6.4)(Dm, H, Dh) * Dm ** (-0.5)), 'Wv': _w((lambda *s: torch.randn(*s, dtype=torch.bfloat16) * 0.4)(Dm, H, Dh) * Dm ** (-0.5)), 'Wo': _w((lambda *s: torch.randn(*s, dtype=torch.bfloat16) * 0.4)(H, Dh, Dm) * (H * Dh) ** (-0.5)), 'seg_len': seg}
    _A_in = _A_setup()

    def _B_setup():
        B, L, D, N = (1, 2048, 1024, 128)
        A_re = -(lambda _x: torch.exp(torch.as_tensor(_x)))((lambda *s: torch.randn(*s, dtype=torch.bfloat16) * 6.4)(D, N))
        A_im = torch.pi * (lambda *s: torch.randn(*s, dtype=torch.bfloat16) * 0.05)(D, N)
        B_re = (lambda *s: torch.randn(*s, dtype=torch.bfloat16) * 0.1)(D, N)
        B_im = (lambda *s: torch.randn(*s, dtype=torch.bfloat16) * 0.1)(D, N)
        C_re = (lambda *s: torch.randn(*s, dtype=torch.bfloat16) * 0.1)(D, N)
        C_im = (lambda *s: torch.randn(*s, dtype=torch.bfloat16) * 0.1)(D, N)
        log_dt = (lambda *s: torch.randn(*s, dtype=torch.bfloat16) * 0.05)(D) * 0.5 - 4.0
        Dskip = (lambda *s: torch.randn(*s, dtype=torch.bfloat16) * 0.05)(D)
        return {'u': _w((lambda *s: torch.randn(*s, dtype=torch.bfloat16) * 0.05)(B, L, D)), 'A_re': _w(A_re), 'A_im': _w(A_im), 'B_re': _w(B_re), 'B_im': _w(B_im), 'C_re': _w(C_re), 'C_im': _w(C_im), 'log_dt': _w(log_dt), 'Dskip': _w(Dskip)}
    _B_in = _B_setup()
    return {'A_x': _A_in['x'], 'A_mem0': _A_in['mem0'], 'A_Wq': _A_in['Wq'], 'A_Wk': _A_in['Wk'], 'A_Wv': _A_in['Wv'], 'A_Wo': _A_in['Wo'], 'A_seg_len': _A_in['seg_len'], 'B_u': _B_in['u'], 'B_A_re': _B_in['A_re'], 'B_A_im': _B_in['A_im'], 'B_B_re': _B_in['B_re'], 'B_B_im': _B_in['B_im'], 'B_C_re': _B_in['C_re'], 'B_C_im': _B_in['C_im'], 'B_log_dt': _B_in['log_dt'], 'B_Dskip': _B_in['Dskip']}

def reference(A_x, A_mem0, A_Wq, A_Wk, A_Wv, A_Wo, A_seg_len, B_u, B_A_re, B_A_im, B_B_re, B_B_im, B_C_re, B_C_im, B_log_dt, B_Dskip):

    def _A_ref(x, mem0, Wq, Wk, Wv, Wo, seg_len):
        B, S, Dm = x.shape
        H, Dh = (Wq.shape[1], Wq.shape[2])
        M = mem0.shape[1]
        scale = Dh ** (-0.5)
        n_seg = S // seg_len
        L = M + seg_len
        idx = torch.arange(L)
        mask = (idx[:, None] < M) | (idx[:, None] >= idx[None, :])
        mem = mem0
        outs = []
        for s in range(n_seg):
            xs = x[:, s * seg_len:(s + 1) * seg_len, :].clone()
            h = torch.concatenate([mem, xs], axis=1)
            q = torch.einsum('btd,dhe->bhte', h, Wq)
            k = torch.einsum('btd,dhe->bhte', h, Wk)
            v = torch.einsum('btd,dhe->bhte', h, Wv)
            scores = torch.einsum('bhqe,bhke->bhqk', q, k) * scale
            scores = torch.where(mask[None, None], scores, -1000000000.0)
            p = _softmax(scores, axis=-1)
            o = torch.einsum('bhqk,bhke->bhqe', p, v)
            o = torch.einsum('bhte,hed->btd', o, Wo)
            mem = o[:, :M, :].clone()
            outs.append(o[:, M:, :])
        return torch.concatenate(outs, axis=1)

    def _B_ref(u, A_re, A_im, B_re, B_im, C_re, C_im, log_dt, Dskip):
        Bsz, L, D = u.shape
        dt = torch.exp(log_dt)[:, None]
        A = A_re + 1j * A_im
        Bc = B_re + 1j * B_im
        Cc = C_re + 1j * C_im
        logdA = dt * A
        dB = dt * Bc
        l = (lambda x, dt: x.to(dt))(torch.arange(L), A_re.dtype)
        P = torch.exp(logdA[:, :, None] * l[None, None, :])
        K = torch.einsum('dn,dnl,dn->dl', Cc, P, dB).real
        L2 = 2 * L
        Kp = _pad(K, ((0, 0), (0, L)))
        up = (lambda x, *d: x.permute(*d))(u, 0, 2, 1)
        up = _pad(up, ((0, 0), (0, 0), (0, L)))
        Kf = (lambda x, axes=(-2, -1): torch.fft.rfft2(x.float(), dim=axes))(Kp[:, None, :], axes=(-2, -1))
        Uf = (lambda x, axes=(-2, -1): torch.fft.rfft2(x.float(), dim=axes))(up[:, :, None, :], axes=(-2, -1))
        Yf = Uf * Kf[None, :, :, :]
        y = (lambda x, s, axes=(-2, -1): torch.fft.irfft2(x, s=s, dim=axes).to(torch.bfloat16))(Yf, (1, L2), axes=(-2, -1))[:, :, 0, :L]
        y = (lambda x, *d: x.permute(*d))(y, 0, 2, 1) + u * Dskip[None, None, :]
        return y
    a = _A_ref(A_x, A_mem0, A_Wq, A_Wk, A_Wv, A_Wo, A_seg_len)
    b = _B_ref(B_u, B_A_re, B_A_im, B_B_re, B_B_im, B_C_re, B_C_im, B_log_dt, B_Dskip)
    return torch.concatenate([a, b], axis=-1)
```

```python
from emit import Regs, R
import layout as LY

L_KV = 0
L_RT = 4096
L_VP = 14336
L_CP = 18432
L_FL = 19456
L_OB = 20480
L_ST = 40960
SM = "v_smfmac_f32_16x16x64_bf16"
MF = "v_mfma_f32_16x16x32_bf16"
MH = "v_mfma_f32_16x16x16_bf16"
SCALE_LOG2E = 0x3E0293EE
RANGE_T = 0x42200000
SPIN_MAX = 400000
DPP8 = "row_ror:8 row_mask:0xf bank_mask:0xf"


class P:
    dA = 22
    dB = 0
    dD = 0
    dF = 0
    nA = 0
    bpos = 1
    cann = 1
    dN = 0
    nD = 105
    csep = 4
    nrep = 4
    far = True
    flags = True
    stamps = False
    times = False
    force_general = 0
    place = "KVQO"
    dbg = ""
    dstep = 4
    nsteps = 64


def emit_chain(e, S, p, st, tag):
    v = Regs("v", 0, 256)
    names = ("tid lane l16 l8 l4 idx dma rtw rtk rtr vpw ast0 ast2 aldm bst cst dst kxr vxr kmst vmst "
             "own16 ownA ownA2 cin fbs fbl fis fil fcs stv oob t0 t1 t2 t3 mx zr jnk pa pb pd fms fmv").split()
    (tid, lane, l16, l8, l4, idx, dma, rtw, rtk, rtr, vpw, ast0, ast2, aldm, bst, cst, dst, kxr, vxr, kmst,
     vmst, own16, ownA, ownA2, cin, fbs, fbl, fis, fil, fcs, stv, oob, t0, t1, t2, t3, mx, zr, jnk, pa, pb,
     pd, fms, fmv) = (v.alloc(n) for n in names)
    cld = v.alloc("cld", 3)
    aldx = v.alloc("aldx", 3)
    sent = v.alloc("sent", 4, 2)
    senz = v.alloc("senz", 4, 2)
    accP = v.alloc("accP", 16, 2)
    accV = v.alloc("accV", 8, 2)
    accO = v.alloc("accO", 4, 2)
    fo = v.alloc("fo", 8, 2)
    qf = v.alloc("qf", 2, 2)
    F = v.alloc("F", 16, 2)
    I = v.alloc("I", 4, 2)
    T = v.alloc("T", 64, 2)
    U = v.alloc("U", 64, 2)
    KV, Rr, Sc, PM, A2 = U[0:16], U[16:20], U[20:32], U[32:34], U[34:38]
    Pb, E, O, Ost, Sx = U[38:42], U[42:46], U[46:54], U[54:58], U[58:64]
    X, XM, VP = T[0:12], T[12:16], T[16:28]
    Em, Ls, Lt, Lu = T[28], T[29], T[30], T[31]
    Cx, Own, Cs, Dp = T[0:12], T[12:16], T[16:20], T[20:22]
    WP = R("a", 0, 192)
    WOa = R("a", 192, 64)
    WO = lambda b: WOa.sub(8 * b, 8) if b < 8 else U.sub(8 * (b - 8), 8)

    ws, tsrd = S["ws"], S["tsrd"]
    sx, sj, sw = S["x"], S["j"], S["w"]
    s = S["alloc"]
    snames = "step oD oB oA oC oKV oKM a0 a1 a2 spin rD rA rC thr bD bA sz sz1 oFB oFC".split()
    (step, oD, oB, oA, oC, oKV, oKM, a0, a1, a2, spin, rD, rA, rC, thr, bD, bA, sz, sz1, oFB,
     oFC) = (s.alloc(tag + n) for n in snames)
    oFS = s.alloc(tag + "oFS", 3)
    oFK = s.alloc(tag + "oFK", 2)
    kv = s.alloc(tag + "kv", 2)
    msk = s.alloc(tag + "msk", 8, 2)
    mt = s.alloc(tag + "mt", 2, 2)
    cf = s.alloc(tag + "cf", 4, 4)
    NST = 12
    if p.stamps:
        ts = s.alloc(tag + "ts", 2 * NST, 2)
        fails = s.alloc(tag + "fails", 4)
    dead = S["exit"]

    def stamp(i):
        if p.stamps:
            e(f"s_memtime {ts.sub(2 * i, 2)}")

    def count_fail(i):
        if p.stamps:
            e(f"s_add_u32 {fails[i]}, {fails[i]}, 1")

    def select(dstreg, val, cond):
        e(cond)
        e.nop(2)
        e(f"v_cndmask_b32 {dstreg}, {oob}, {val}, vcc")

    def cross_off(dstreg, stepreg, tmp):
        e(f"s_lshr_b32 {tmp}, {stepreg}, 3")
        e(f"s_lshr_b32 {tmp}, {S['par']}, {tmp}")
        e(f"s_and_b32 {tmp}, {tmp}, 1")
        e(f"s_lshl_b32 {tmp}, {tmp}, 13")
        e(f"s_lshl_b32 {dstreg}, {stepreg}, 18")
        e(f"s_add_u32 {dstreg}, {dstreg}, {tmp}")
        e(f"s_add_u32 {dstreg}, {dstreg}, {LY.RING_C}")

    e(f"v_and_b32 {lane}, 63, {tid}")
    e(f"v_lshlrev_b32 {l16}, 4, {lane}")
    e(f"v_lshlrev_b32 {l8}, 3, {lane}")
    e(f"v_lshlrev_b32 {l4}, 2, {lane}")
    for r in (pa, pb, pd):
        e(f"v_mov_b32 {r}, 0")
    for i in range(4):
        e(f"v_mov_b32 {sent[i]}, -1")
        e(f"v_bfrev_b32 {senz[i]}, 1")
    e(f"v_bfrev_b32 {oob}, 1")
    e(f"v_mov_b32 {zr}, 0")
    e(f"v_mov_b32 {stv}, 0")
    e(f"v_bfe_u32 {t0}, {lane}, 1, 1")
    e(f"v_mul_u32_u24 {t0}, 0xaaaa, {t0}")
    e(f"v_add_u32 {idx}, 0x4444, {t0}")
    e(f"s_lshl_b32 {a0}, {sw}, 12")
    e(f"v_add_u32 {dma}, {a0}, {l16}")
    n_, g_ = t2, t3
    e(f"v_and_b32 {n_}, 15, {lane}")
    e(f"v_lshrrev_b32 {g_}, 4, {lane}")
    lo8 = f"v_cmp_gt_u32 vcc, 8, {n_}"
    hi8 = f"v_cmp_le_u32 vcc, 8, {n_}"
    e(f"s_mul_i32 {a0}, {sw}, 2304")
    e(f"s_add_u32 {a0}, {a0}, {L_RT}")
    e(f"v_mul_u32_u24 {t0}, 288, {g_}")
    e(f"v_lshl_add_u32 {t0}, {n_}, 2, {t0}")
    e(f"v_add_u32 {rtw}, {a0}, {t0}")
    e(f"v_add_u32 {rtk}, 1152, {rtw}")
    e(f"v_mul_u32_u24 {t0}, 144, {n_}")
    e(f"v_lshl_add_u32 {rtr}, {g_}, 5, {t0}")
    e(f"s_lshl_b32 {a0}, {sw}, 10")
    e(f"v_add_u32 {vpw}, {a0}, {l16}")
    e(f"v_mov_b32 {t0}, {SCALE_LOG2E:#x}")
    e(lo8)
    e.nop(2)
    e(f"v_cndmask_b32 {qf[0]}, 1.0, {t0}, vcc")
    e(f"s_mul_i32 {a0}, {sj}, 1280")
    e(f"v_add_u32 {ownA}, {a0}, {l16}")
    select(ast0, ownA, lo8)
    select(ownA2, ownA, f"v_cmp_gt_u32 vcc, 16, {lane}")
    e(f"v_lshlrev_b32 {t0}, 5, {n_}")
    e(f"v_lshl_add_u32 {t0}, {g_}, 4, {t0}")
    e(f"s_add_u32 {a1}, {a0}, {1024 - 256}")
    e(f"v_add_u32 {t0}, {a1}, {t0}")
    select(t0, t0, hi8)
    select(ast2, t0, f"v_cmp_gt_u32 vcc, 2, {g_}")
    for k in range(3):
        e(f"s_xor_b32 {a0}, {sj}, {k + 1}")
        e(f"s_mul_i32 {a0}, {a0}, 1280")
        e(f"v_add_u32 {aldx[k]}, {a0}, {l16}")
    e(f"s_and_b32 {a0}, {sj}, 28")
    e(f"s_mul_i32 {a0}, {a0}, 1280")
    e(f"s_add_u32 {a0}, {a0}, 1024")
    e(f"v_add_u32 {aldm}, {a0}, {l4}")
    e(f"v_lshrrev_b32 {t0}, 1, {n_}")
    e(f"v_lshlrev_b32 {t0}, 2, {t0}")
    e(f"v_and_b32 {mx}, 1, {n_}")
    e(f"v_add_u32 {t0}, {t0}, {mx}")
    e(f"v_and_b32 {mx}, 1, {g_}")
    e(f"v_lshl_add_u32 {t0}, {mx}, 1, {t0}")
    e(f"v_lshrrev_b32 {mx}, 1, {g_}")
    e(f"v_lshl_add_u32 {t0}, {mx}, 4, {t0}")
    e(f"s_lshl_b32 {a0}, {sj}, 9")
    e(f"v_lshl_add_u32 {t0}, {t0}, 4, {a0}")
    select(bst, t0, lo8)
    e(f"v_add_u32 {t0}, {a0}, {l16}")
    select(own16, t0, f"v_cmp_gt_u32 vcc, 32, {lane}")
    e(f"v_lshrrev_b32 {t0}, 2, {lane}")
    e(f"v_lshlrev_b32 {t0}, 5, {t0}")
    e(f"v_and_b32 {mx}, 3, {lane}")
    e(f"v_lshl_add_u32 {t0}, {mx}, 2, {t0}")
    e(f"v_add_u32 {dst}, {a0}, {t0}")
    e(f"s_lshr_b32 {a0}, {sj}, 1")
    e(f"s_lshl_b32 {a0}, {a0}, 14")
    e(f"s_and_b32 {a1}, {sj}, 1")
    e(f"s_lshl_b32 {a1}, {a1}, 12")
    e(f"s_add_u32 {a0}, {a0}, {a1}")
    e(f"v_mov_b32 {fcs}, {oob}")
    for k in range(3):
        e(f"s_add_u32 {a1}, {sx}, {k + 1}")
        e(f"s_and_b32 {a1}, {a1}, 3")
        e(f"s_lshl_b32 {a1}, {a1}, 10")
        e(f"s_add_u32 {a1}, {a1}, {a0}")
        e(f"v_add_u32 {cld[k]}, {a1}, {l16}")
        e(f"s_add_u32 {a1}, {a1}, {k * p.csep}")
        e(f"v_writelane_b32 {fcs}, {a1}, {k}")
    e(f"s_lshl_b32 {a1}, {sx}, 10")
    e(f"s_add_u32 {a0}, {a0}, {a1}")
    e(f"v_add_u32 {cin}, {a0}, {l16}")
    e(f"s_mov_b32 {oFS[0]}, {a0}")
    e(f"s_and_b32 {a1}, {sw}, 1")
    e(f"s_lshl_b32 {a1}, {a1}, 9")
    e(f"s_add_u32 {a0}, {a0}, {a1}")
    e(f"v_add_u32 {cst}, {a0}, {l8}")
    e(f"v_lshrrev_b32 {t0}, 2, {n_}")
    e(f"v_and_b32 {mx}, 3, {n_}")
    e(f"v_lshl_add_u32 {t0}, {t0}, 3, {mx}")
    e(f"v_lshlrev_b32 {t0}, 4, {t0}")
    e(f"v_lshl_add_u32 {kxr}, {g_}, 9, {t0}")
    e(f"v_lshlrev_b32 {t0}, 4, {n_}")
    e(f"v_lshl_add_u32 {vxr}, {g_}, 9, {t0}")
    e(f"v_lshl_add_u32 {vmst}, {g_}, 2, {t0}")
    e(f"v_lshlrev_b32 {t0}, 6, {n_}")
    e(f"v_lshl_add_u32 {t0}, {g_}, 4, {t0}")
    e(f"v_subrev_u32 {t0}, 512, {t0}")
    select(kmst, t0, hi8)
    e(f"s_lshl_b32 {a0}, {sx}, 3")
    e(f"s_lshr_b32 {a1}, {sj}, 2")
    e(f"s_add_u32 {a0}, {a0}, {a1}")
    e(f"s_lshl_b32 {a0}, {a0}, 7")
    e(f"s_and_b32 {a1}, {sj}, 3")
    e(f"s_lshl_b32 {a1}, {a1}, 2")
    e(f"s_add_u32 {a0}, {a0}, {a1}")
    e(f"s_add_u32 {oFK[0]}, {a0}, {LY.FK}")
    e(f"s_add_u32 {oFK[1]}, {a0}, {LY.FK + 16}")
    e(f"s_add_u32 {a0}, {a0}, {LY.FK + 32}")
    e(f"v_mov_b32 {t0}, {a0}")
    select(fms, t0, f"v_cmp_eq_u32 vcc, 0, {lane}")
    e(f"s_lshl_b32 {a0}, {sj}, 2")
    e(f"v_lshl_add_u32 {t0}, {lane}, 8, {a0}")
    select(fbs, t0, f"v_cmp_gt_u32 vcc, {p.nrep}, {lane}")
    e(f"s_and_b32 {a0}, {sj}, {p.nrep - 1}")
    e(f"s_lshl_b32 {a0}, {a0}, 8")
    e(f"v_and_b32 {t0}, 31, {lane}")
    e(f"v_lshl_add_u32 {fbl}, {t0}, 2, {a0}")
    e(f"s_lshr_b32 {a0}, {sj}, 2")
    e(f"s_lshl_b32 {a0}, {a0}, 8")
    e(f"s_add_u32 {a0}, {a0}, 4096")
    e(f"v_and_b32 {t0}, 3, {lane}")
    e(f"v_lshl_add_u32 {fil}, {t0}, 2, {a0}")
    e(f"s_and_b32 {a1}, {sj}, 3")
    select(fis, fil, f"v_cmp_eq_u32 vcc, {a1}, {lane}")
    e(f"s_mov_b32 {thr}, {RANGE_T:#x}")
    e(f"s_mov_b32 {sz}, 0x80000000")
    e(f"s_mov_b32 {sz1}, 0x80000001")
    e(f"s_lshl_b32 {bD}, {sx}, 16")
    e(f"s_lshl_b32 {bA}, {sx}, 18")
    e(f"s_add_u32 {bA}, {bA}, {LY.RING_A}")
    e(f"s_add_u32 {bD}, {bD}, {LY.RING_D}")
    e(f"s_lshl_b32 {oFB}, {sx}, 13")
    e(f"s_add_u32 {oFB}, {oFB}, {LY.FLAGS}")

    e(f"s_lshl_b32 {a0}, {sw}, 14")
    e(f"s_add_u32 {oD}, {bD}, {a0}")
    e(f"s_add_u32 {oB}, {oD}, {LY.RING_B - LY.RING_D}")
    e(f"s_lshl_b32 {a0}, {sw}, 16")
    e(f"s_add_u32 {oA}, {bA}, {a0}")
    e(f"s_lshl_b32 {oC}, {sw}, 18")
    e(f"s_add_u32 {oC}, {oC}, {LY.RING_C}")
    e(f"s_add_u32 {rC}, {oC}, 8192")
    e(f"s_mov_b32 {oFC}, {LY.RING_C + (63 << 18)}")
    e(f"s_mov_b32 {a2}, {LY.RING_C + (63 << 18) + 8192}")
    e(f"buffer_load_dwordx4 {T[0:4]}, {own16}, {ws}, {oD} offen sc1")
    e(f"buffer_load_dwordx4 {T[4:8]}, {own16}, {ws}, {oB} offen sc1")
    e(f"buffer_load_dwordx4 {T[8:12]}, {ownA}, {ws}, {oA} offen sc1")
    e(f"buffer_load_dwordx4 {T[12:16]}, {ownA2}, {ws}, {oA} offen offset:1024 sc1")
    e(f"buffer_load_dword {T[20]}, {fbs}, {ws}, {oFB} offen sc1")
    e(f"buffer_load_dword {T[21]}, {fis}, {ws}, {oFB} offen sc1")
    e(f"buffer_load_dword {T[22]}, {fbs}, {ws}, {oFB} offen offset:2048 sc1")
    e(f"s_load_dwordx2 {tsrd[0:2]}, s[0:1], 8")
    e(f"v_lshrrev_b32 {mx}, 2, {n_}")
    e(f"v_lshlrev_b32 {mx}, 1, {mx}")
    e(f"v_and_b32 {t0}, 1, {n_}")
    e(f"v_add_u32 {mx}, {mx}, {t0}")
    e(f"v_lshlrev_b32 {mx}, 11, {mx}")
    e(f"v_lshl_add_u32 {mx}, {g_}, 5, {mx}")
    e(f"v_bfe_u32 {t0}, {n_}, 1, 1")
    e(f"v_lshl_add_u32 {mx}, {t0}, 4, {mx}")
    e(f"s_lshl_b32 {a0}, {sj}, 6")
    e(f"s_mov_b32 {tsrd[2]}, 16384")
    e(f"s_mov_b32 {tsrd[3]}, 0x20000")
    e("s_waitcnt lgkmcnt(0)")
    e(f"buffer_load_dwordx4 {T[16:20]}, {mx}, {tsrd}, {a0} offen")
    e("s_waitcnt vmcnt(0)")
    e(f"s_cmp_eq_u32 {sw}, 0")
    e(f"s_cselect_b64 vcc, -1, 0")
    for i in range(4):
        e(f"v_max_i32 {T[16 + i]}, {sz1}, {T[16 + i]}")
        e(f"v_cndmask_b32 {T[16 + i]}, {oob}, {T[16 + i]}, vcc")
    e(f"buffer_store_dwordx4 {T[16:20]}, {own16}, {ws}, {oD} offen {st}")
    e(f"buffer_store_dwordx4 {sent}, {own16}, {ws}, {oB} offen {st}")
    e(f"buffer_store_dwordx4 {sent}, {ownA}, {ws}, {oA} offen {st}")
    e(f"buffer_store_dwordx4 {sent}, {ownA2}, {ws}, {oA} offen offset:1024 {st}")
    e(f"buffer_store_dwordx4 {sent}, {cin}, {ws}, {oC} offen sc1")
    e(f"buffer_store_dwordx4 {sent}, {cin}, {ws}, {rC} offen sc1")
    e(f"buffer_store_dword {zr}, {fcs}, {ws}, {a2} offen sc1")
    e(f"buffer_store_dword {zr}, {fbs}, {ws}, {oFB} offen {st}")
    e(f"buffer_store_dword {zr}, {fis}, {ws}, {oFB} offen {st}")
    e(f"buffer_store_dword {zr}, {fbs}, {ws}, {oFB} offen offset:2048 {st}")
    e(f"buffer_store_dword {zr}, {fcs}, {ws}, {oFC} offen sc1")
    e(f"buffer_store_dword {zr}, {fms}, {ws}, 0 offen sc1")
    e("s_waitcnt vmcnt(0)")
    e("s_barrier")
    S["signal_ready"](e, t0, mx)

    wa, wb = t0, mx

    def stage_matrix(kern_off, pitch_log2, base_expr, half):
        e(f"s_load_dwordx2 {tsrd[0:2]}, s[0:1], {kern_off}")
        e(f"s_mov_b32 {tsrd[2]}, {8 << 20}")
        e(f"s_mov_b32 {tsrd[3]}, 0x20000")
        e(f"v_lshrrev_b32 {wa}, 2, {lane}")
        e(f"v_lshlrev_b32 {wa}, {pitch_log2}, {wa}")
        e(f"v_and_b32 {wb}, 3, {lane}")
        e(f"v_lshl_add_u32 {wa}, {wb}, 4, {wa}")
        base_expr()
        e(f"s_lshl_b32 {a1}, {sw}, {8 + pitch_log2}")
        e(f"s_add_u32 {a0}, {a0}, {a1}")
        e(f"s_lshl_b32 {a1}, {sw}, 14")
        e(f"s_add_u32 {a1}, {a1}, {65536 * half}")
        e("s_waitcnt lgkmcnt(0)")
        for i in range(16):
            e(f"s_mov_b32 m0, {a1}")
            e(f"s_add_u32 {a1}, {a1}, 1024")
            e(f"buffer_load_dwordx4 {wa}, {tsrd}, {a0} offen lds")
            e(f"s_add_u32 {a0}, {a0}, {16 << pitch_log2}")

    def base_qkv():
        e(f"s_lshl_b32 {a0}, {sx}, 5")
        e(f"s_add_u32 {a0}, {a0}, {sj}")
        e(f"s_lshl_b32 {a0}, {a0}, 6")

    def base_o():
        e(f"s_lshl_b32 {a0}, {sx}, 21")
        e(f"s_lshl_b32 {a1}, {sj}, 6")
        e(f"s_add_u32 {a0}, {a0}, {a1}")

    def tr_addr(dstreg, sh_hb, sh_g0, sh_g1):
        x_ = n_
        e(f"v_bfe_u32 {dstreg}, {lane}, 2, 1")
        for bit, sh in ((3, sh_hb), (4, sh_g0), (5, sh_g1)):
            e(f"v_bfe_u32 {x_}, {lane}, {bit}, 1")
            e(f"v_lshl_add_u32 {dstreg}, {x_}, {sh}, {dstreg}")
        e(f"v_lshlrev_b32 {dstreg}, 6, {dstreg}")
        e(f"v_and_b32 {x_}, 3, {lane}")
        e(f"v_lshl_add_u32 {dstreg}, {x_}, 3, {dstreg}")

    def tr_tile(W, addr, b, extra):
        for r in (0, 2, 4, 6):
            off = (64 * b + 32 * (r >> 2) + 2 * ((r >> 1) & 1)) * 64 + extra
            e(f"ds_read_b64_tr_b16 {W.sub(r, 2)}, {addr} offset:{off}")

    def tr_p1(tile0, addr):
        for b in range(4):
            for t in range(2):
                tr_tile(WP.sub(8 * (b * 6 + tile0 + t), 8), addr, b, 32 * t)
            e("s_waitcnt lgkmcnt(0)")

    stage_matrix(16, 13, base_qkv, 0)
    stage_matrix(24, 13, base_qkv, 1)
    tr_addr(fo[0], 3, 2, 4)
    tr_addr(fo[2], 2, 4, 3)
    e(f"s_lshl_b32 {a1}, {sw}, 14")
    e(f"v_add_u32 {fo[0]}, {a1}, {fo[0]}")
    e(f"v_add_u32 {fo[1]}, 0x10000, {fo[0]}")
    e(f"s_and_b32 {a1}, {sw}, 1")
    e(f"s_lshl_b32 {a1}, {a1}, 5")
    e(f"s_add_u32 {a1}, {a1}, 0x10000")
    e(f"v_add_u32 {fo[2]}, {a1}, {fo[2]}")
    calibrate = S["calibrate"] and st == ""
    if calibrate:
        skip = e.new_label("cal")
        e(f"s_lshr_b32 {a0}, {sj}, 3")
        e(f"s_or_b32 {a0}, {a0}, {sx}")
        e(f"s_xor_b32 {a1}, {sw}, 3")
        e(f"s_or_b32 {a0}, {a0}, {a1}")
        e(f"s_cbranch_scc1 {skip}")
        e(f"s_lshl_b32 {a0}, {sj}, 21")
        e(f"s_add_u32 {a0}, {a0}, {LY.RING_C + (7 << 18)}")
        e(f"s_add_u32 {a1}, {a0}, 8192")
        e(f"s_mov_b32 {rD}, -1")
        e(f"s_mov_b32 {rA}, -1")
        e(f"s_mov_b32 {step}, 0")
        e.label(skip + "_l")
        for off, best in ((a0, rD), (a1, rA)):
            e(f"s_memtime {msk[0:2]}")
            e("s_waitcnt lgkmcnt(0)")
            e(f"s_load_dword {a2}, {ws[0:2]}, {off} glc")
            e("s_waitcnt lgkmcnt(0)")
            e(f"s_memtime {msk[2:4]}")
            e("s_waitcnt lgkmcnt(0)")
            e(f"s_sub_u32 {a2}, {msk[2]}, {msk[0]}")
            e(f"s_min_u32 {best}, {best}, {a2}")
        e(f"s_add_u32 {step}, {step}, 1")
        e(f"s_cmp_lt_u32 {step}, 5")
        e(f"s_cbranch_scc1 {skip}_l")
        e(f"s_cmp_lt_u32 {rA}, {rD}")
        e(f"s_cselect_b32 {a0}, 1, 0")
        e(f"s_lshl_b32 {a0}, {a0}, {sj}")
        e(f"s_add_u32 {a0}, {a0}, 0x10000")
        e(f"s_atomic_add {a0}, {S['dbg'][0:2]}, {S['parword']}")
        e("s_waitcnt lgkmcnt(0)")
        e.label(skip)
    e("s_waitcnt vmcnt(16)")
    tr_p1(0, fo[0])
    stage_matrix(32, 13, base_qkv, 0)
    e("s_waitcnt vmcnt(16)")
    tr_p1(2, fo[1])
    stage_matrix(40, 11, base_o, 1)
    e("s_waitcnt vmcnt(16)")
    tr_p1(4, fo[0])
    e("s_waitcnt vmcnt(0)")
    e("s_barrier")
    for b in range(16):
        tr_tile(WO(b), fo[2], b, 0)
        if b & 1:
            e("s_waitcnt lgkmcnt(0)")
    e("s_barrier")

    S["wait_ready"](e, fo[4:6], calibrate)

    e(f"s_mov_b32 {a0}, 63")
    cross_off(oFC, a0, a1)
    e(f"s_add_u32 {oFS[0]}, {oFS[0]}, {oFC}")
    e(f"s_add_u32 {oFS[1]}, {oFS[0]}, {p.csep}")
    e(f"s_add_u32 {oFS[2]}, {oFS[0]}, {2 * p.csep}")
    e(f"s_mov_b32 {step}, 0")
    e(f"s_mov_b32 {oD}, {bD}")
    e(f"s_lshl_b32 {a0}, {sx}, 5")
    e(f"s_add_u32 {a0}, {a0}, {sj}")
    e(f"s_lshl_b32 {oKV}, {a0}, 11")
    e(f"s_add_u32 {oKV}, {oKV}, {LY.KX}")
    e(f"s_lshl_b32 {oKM}, {a0}, 9")
    e(f"s_add_u32 {oKM}, {oKM}, {LY.KM}")
    e(f"s_mov_b32 {spin}, 0")
    for i in range(4):
        e(f"s_mov_b32 {cf[i]}, 0")
    if p.stamps:
        e(f"s_lshl_b32 {a0}, {sw}, 13")
        e(f"v_lshl_add_u32 {t3}, {lane}, 2, {a0}")
        for i in range(4):
            e(f"s_mov_b32 {fails[i]}, 0")
        for i in range(NST):
            e(f"s_mov_b32 {ts[2 * i]}, 0")

    lab = {w: f"L_{tag}_w{w}" for w in range(4)}
    for w in (1, 2, 3):
        e(f"s_cmp_eq_u32 {sw}, {w}")
        e(f"s_cbranch_scc1 {lab[w]}")

    def spin_check():
        e(f"s_add_u32 {spin}, {spin}, 1")
        e(f"s_cmp_gt_u32 {spin}, {SPIN_MAX}")
        e(f"s_cbranch_scc1 {dead}")

    def load_kv_words():
        e(f"s_load_dword {kv[0]}, {ws[0:2]}, {oFK[0]} glc")
        e(f"s_load_dword {kv[1]}, {ws[0:2]}, {oFK[1]} glc")

    def wait_kv(name):
        if not p.flags:
            return
        e.label(name)
        e(f"s_min_u32 {a0}, {kv[0]}, {kv[1]}")
        e(f"s_cmp_gt_u32 {a0}, {step}")
        e(f"s_cbranch_scc1 {name}_ok")
        load_kv_words()
        spin_check()
        e("s_waitcnt lgkmcnt(0)")
        e(f"s_branch {name}")
        e.label(name + "_ok")

    def prefetch_kv():
        e(f"s_mov_b32 m0, {L_KV}")
        e(f"s_add_u32 {a0}, {oKV}, {LY.VX - LY.KX - 2048}")
        e(f"buffer_load_dwordx4 {l16}, {ws}, {oKV} offen sc1 lds")
        e(f"buffer_load_dwordx4 {l16}, {ws}, {oKV} offen offset:1024 sc1 lds")
        e(f"buffer_load_dwordx4 {l16}, {ws}, {a0} offen offset:2048 sc1 lds")
        e(f"buffer_load_dwordx4 {l16}, {ws}, {a0} offen offset:3072 sc1 lds")

    def publish_km():
        e(f"s_add_u32 {a0}, {oKM}, {LY.VM - LY.KM}")
        e(f"buffer_store_dwordx4 {Rr}, {kmst}, {ws}, {oKM} offen sc1")
        e(f"buffer_store_dword {A2[0]}, {vmst}, {ws}, {a0} offen sc1")
        e(f"buffer_store_dword {A2[2]}, {vmst}, {ws}, {a0} offen offset:256 sc1")

    def zero(acc):
        for i in range(acc.n):
            e(f"v_mov_b32 {acc[i]}, 0")

    for w in range(4):
        L = lambda n: f"L_{tag}_w{w}_{n}"
        order = [k ^ w for k in range(4)]

        def load_block(b, off):
            e(f"buffer_load_dwordx4 {F.sub(4 * b, 4)}, {dma}, {ws}, {off} offen offset:{1024 * b} sc1")

        def dummy():
            e(f"buffer_load_dword {jnk}, {oob}, {ws}, 0 offen")

        def issue(off):
            for k, b in enumerate(order):
                load_block(b, off)
                if k < 3:
                    e("s_nop 3")

        def products(f, b, acc, W, nw, nt, after_first=None):
            fill = [f"v_min3_i32 {mx}, {f[0]}, {f[1]}, {f[2]}", f"v_min_i32 {mx}, {mx}, {f[3]}",
                    f"v_cmp_eq_u32 vcc, {sz}, {mx}"]
            for t in range(nt):
                e(f"{SM} {acc.sub(4 * t, 4)}, {f}, {W.sub(8 * (b * nw + t), 8)}, {idx}")
                if t < nt - 1:
                    e(fill.pop(0))
            for x in fill:
                e(x)

        def gather(name, acc, W, nw, nt):
            for k, b in enumerate(order):
                e(f"s_waitcnt vmcnt({3 - k})")
                products(F.sub(4 * b, 4), b, acc, W, nw, nt)
                e(f"s_cbranch_vccnz {L(f'{name}in{k}')}")
            e.label(L(name + "done"))

        def gather_wait(name, off, acc, W, nw, nt, fi):
            for k, b in enumerate(order):
                e.label(L(f"{name}in{k}"))
                for _ in range(k):
                    dummy()
                for k2, b2 in enumerate(order):
                    if k2 != k:
                        e(f"s_mov_b64 {msk.sub(2 * b2, 2)}, {0 if k2 < k else -1}")
                e(f"s_branch {L(f'{name}re{k}')}")
            e.label(L(name + "loop"))
            for k, b in enumerate(order):
                m = msk.sub(2 * b, 2)
                e(f"s_cmp_eq_u64 {m}, 0")
                e(f"s_cbranch_scc1 {L(f'{name}sk{k}')}")
                e("s_waitcnt vmcnt(3)")
                for i in range(4):
                    e(f"v_cndmask_b32 {I[i]}, 0, {F[4 * b + i]}, {m}")
                others = [msk.sub(2 * b2, 2) for b2 in order if b2 != b]
                e(f"s_or_b64 {mt}, {others[0]}, {others[1]}")
                e(f"s_or_b64 {mt}, {mt}, {others[2]}")
                products(I, b, acc, W, nw, nt)
                e(f"s_or_b64 {mt}, {mt}, vcc")
                e(f"s_cbranch_scc0 {L(name + 'done')}")
                e(f"s_cbranch_vccz {L(f'{name}ok{k}')}")
                e.label(L(f"{name}re{k}"))
                e("s_mov_b64 exec, vcc")
                load_block(b, off)
                e("s_mov_b64 exec, -1")
                e(f"s_mov_b64 {m}, vcc")
                count_fail(fi)
                e(f"s_branch {L(f'{name}nx{k}')}")
                e.label(L(f"{name}ok{k}"))
                e(f"s_mov_b64 {m}, 0")
                e.label(L(f"{name}sk{k}"))
                dummy()
                e.label(L(f"{name}nx{k}"))
            e(f"s_add_u32 {spin}, {spin}, 1")
            e(f"s_cmp_lt_u32 {spin}, {SPIN_MAX}")
            e(f"s_cbranch_scc1 {L(name + 'loop')}")
            e(f"s_branch {dead}")

        def vsm(i):
            b, t = i >> 1, i & 1
            e(f"{SM} {accV.sub(4 * t, 4)}, {F.sub(4 * b, 4)}, {WP.sub(8 * (b * 6 + 4 + t), 8)}, {idx}")

        def fold2(acc):
            e(f"v_pk_add_f32 {fo[0:2]}, {acc[0:2]}, {acc[2:4]}")
            e(f"v_pk_add_f32 {fo[2:4]}, {acc[4:6]}, {acc[6:8]}")

        def read_parts(base):
            for i, q in enumerate(q for q in range(4) if q != w):
                e(f"ds_read_b128 {VP.sub(4 * i, 4)}, {l16} offset:{base + 1024 * q}")

        def sum_parts():
            for i in range(3):
                e(f"s_waitcnt lgkmcnt({2 - i})")
                e(f"v_pk_add_f32 {fo[0:2]}, {fo[0:2]}, {VP.sub(4 * i, 2)}")
                e(f"v_pk_add_f32 {fo[2:4]}, {fo[2:4]}, {VP.sub(4 * i + 2, 2)}")

        def last_step_exit():
            e(f"s_cmp_eq_u32 {step}, {p.nsteps - 1}")
            e(f"s_cbranch_scc1 {L('done')}")

        def dump_stamps():
            if p.stamps and w < 3:
                e("s_waitcnt lgkmcnt(0)")
                for i in range(NST):
                    e(f"v_writelane_b32 {t1}, {ts[2 * i]}, {i}")
                for i in range(4):
                    e(f"v_writelane_b32 {t1}, {fails[i]}, {12 + i}")
                e(f"ds_write_b32 {t3}, {t1} offset:{L_ST}")
                e(f"v_add_u32 {t3}, 64, {t3}")

        def word(addr, off=0):
            e(f"buffer_store_dword {stv}, {addr}, {ws}, {oFB} offen offset:{off} {st}")

        def gate(name, reg, addr, off):
            e.label(L(name + "poll"))
            for _ in range(10):
                e(f"v_cmp_gt_u32 vcc, {stv}, {reg}")
                e(f"buffer_load_dword {reg}, {addr}, {ws}, {oFB} offen offset:{off} sc1")
                e(f"s_cbranch_vccz {L(name + 'go')}")
            e("s_waitcnt vmcnt(36)")
            e(f"s_add_u32 {spin}, {spin}, 1")
            e(f"s_cmp_lt_u32 {spin}, {SPIN_MAX}")
            e(f"s_cbranch_scc1 {L(name + 'poll')}")
            e(f"s_branch {dead}")
            e.label(L(name + "go"))

        e.label(lab[w])
        if w == 0:
            e(f"v_mov_b32 {PM[1]}, 0")
            e(f"v_mov_b32 {A2[1]}, 0")
            e(f"v_mov_b32 {A2[3]}, 0")
            e(f"s_mov_b32 {kv[0]}, 0")
            e(f"s_mov_b32 {kv[1]}, 0")
            wait_kv(L("kv0"))
            prefetch_kv()
        zero(accP)
        zero(accV)
        e("s_waitcnt vmcnt(0)")
        e("s_barrier")
        issue(oD)
        e.label(L("loop"))
        dump_stamps()
        e(f"s_and_b32 {a0}, {step}, 3")
        e(f"s_add_u32 {oB}, {oD}, {LY.RING_B - LY.RING_D}")
        e(f"s_lshl_b32 {a1}, {a0}, 16")
        e(f"s_add_u32 {oA}, {bA}, {a1}")
        e(f"v_add_u32 {stv}, 1, {stv}")
        if w == 0:
            e(f"ds_read_b128 {KV[0:4]}, {kxr} offset:{L_KV}")
            e(f"ds_read_b128 {KV[4:8]}, {kxr} offset:{L_KV + 64}")
            e(f"ds_read_b128 {KV[8:12]}, {vxr} offset:{L_KV + 2048}")
            e(f"ds_read_b128 {KV[12:16]}, {vxr} offset:{L_KV + 2048 + 256}")
        gather("d", accP, WP, 6, 4)
        if w == 0:
            stamp(1)
        e.nop(1)
        for t in range(4):
            e(f"v_pk_add_f32 {fo.sub(2 * t, 2)}, {accP.sub(4 * t, 2)}, {accP.sub(4 * t + 2, 2)}")
            e(f"ds_write2_b32 {rtw if t < 2 else rtk}, {fo[2 * t]}, {fo[2 * t + 1]} offset0:{16 * (t & 1)} offset1:{16 * (t & 1) + 36}")
        for i in range(4):
            vsm(i)
        e("s_waitcnt lgkmcnt(0)")
        e("s_barrier")
        if w == 0:
            stamp(0)
            for q in range(8):
                e(f"ds_read_b128 {T.sub(4 * q, 4)}, {rtr} offset:{L_RT + 2304 * (q >> 1) + 16 * (q & 1)}")
            vsm(4)
            e("s_waitcnt lgkmcnt(6)")
            for i in range(4):
                e(f"v_pk_mul_f32 {T.sub(2 * i, 2)}, {T.sub(2 * i, 2)}, {qf} op_sel_hi:[1,0]")
            for q in range(1, 4):
                e(f"s_waitcnt lgkmcnt({6 - 2 * q})")
                for i in range(4):
                    e(f"v_pk_fma_f32 {T.sub(2 * i, 2)}, {T.sub(8 * q + 2 * i, 2)}, {qf}, {T.sub(2 * i, 2)} op_sel_hi:[1,0,1]")
            for i in range(4):
                e(f"v_cvt_pk_bf16_f32 {Rr[i]}, {T[2 * i]}, {T[2 * i + 1]}")
            e.nop(2)
            e(f"{MF} {Sc[0:4]}, {KV[0:4]}, {Rr}, 0")
            e(f"{MF} {Sc[4:8]}, {KV[4:8]}, {Rr}, 0")
            e(f"{MF} {Sc[8:12]}, {Rr}, {Rr}, 0")
            e.nop(6)
            e(f"buffer_store_dwordx4 {Sc[0:4]}, {ast0}, {ws}, {oA} offen {st}")
            e(f"buffer_store_dwordx4 {Sc[4:8]}, {ast0}, {ws}, {oA} offen offset:128 {st}")
            e(f"buffer_store_dwordx4 {Sc[8:12]}, {ast2}, {ws}, {oA} offen {st}")
            stamp(2)

            def aloads():
                for q in range(3):
                    e(f"buffer_load_dwordx4 {X.sub(4 * q, 4)}, {aldx[q]}, {ws}, {oA} offen sc1")
                for q in range(4):
                    e(f"buffer_load_dword {XM[q]}, {aldm}, {ws}, {oA} offen offset:{1280 * q} sc1")

            def asum():
                ex = 0
                for q in range(3):
                    e(f"s_waitcnt vmcnt({ex + 6 - q})")
                    if q == 0 and p.bpos == 0:
                        word(fbs)
                        ex = 1
                    src = Sc if q == 0 else Sx
                    e(f"v_pk_add_f32 {Sx[0:2]}, {src[0:2]}, {X.sub(4 * q, 2)}")
                    e(f"v_pk_add_f32 {Sx[2:4]}, {src[2:4]}, {X.sub(4 * q + 2, 2)}")
                e(f"v_maximum3_f32 {mx}, |{Sx[0]}|, |{Sx[1]}|, |{Sx[2]}|")
                e(f"s_waitcnt vmcnt({ex})")
                if p.bpos == 1:
                    word(fbs)
                e(f"v_pk_add_f32 {Sx[4:6]}, {XM[0:2]}, {XM[2:4]}")
                e(f"v_add_f32 {Sx[4]}, {Sx[4]}, {Sx[5]}")
                e(f"v_maximum3_f32 {mx}, {mx}, |{Sx[3]}|, |{Sx[4]}|")
                e(f"v_cmp_ngt_f32 vcc, {thr}, {mx}")

            def exps():
                for i in range(4):
                    e(f"v_exp_f32 {E[i]}, {Sx[i]}")
                e(f"v_exp_f32 {Em}, {Sx[4]}")

            vsm(5)
            vsm(6)
            vsm(7)
            e("s_barrier")
            stamp(10)
            aloads()
            read_parts(L_VP)
            fold2(accV)
            for i in range(4):
                e(f"v_mov_b32_dpp {Sc[i]}, {Sc[4 + i]} row_ror:8 row_mask:0xf bank_mask:0xc")
            sum_parts()
            e(f"v_cvt_pk_bf16_f32 {A2[0]}, {fo[0]}, {fo[1]}")
            e(f"v_cvt_pk_bf16_f32 {A2[2]}, {fo[2]}, {fo[3]}")
            last_step_exit()
            e.label(L("atry"))
            asum()
            exps()
            e(f"s_cbranch_vccnz {L('abad')}")
            e.label(L("agood"))
            if p.bpos == 2:
                word(fbs)
            stamp(3)
            e(f"v_cvt_pk_bf16_f32 {Pb[0]}, {E[0]}, {E[1]}")
            e(f"v_cvt_pk_bf16_f32 {Pb[1]}, {E[2]}, {E[3]}")
            e(f"v_mov_b32_dpp {Lt}, {Em} {DPP8}")
            e(f"v_mov_b32_dpp {Pb[2]}, {Pb[0]} {DPP8}")
            e(f"v_mov_b32_dpp {Pb[3]}, {Pb[1]} {DPP8}")
            e(f"v_cvt_pk_bf16_f32 {PM[0]}, {Em}, {Lt}")
            e(f"v_pk_add_f32 {E[0:2]}, {E[0:2]}, {E[2:4]}")
            e(f"{MF} {O[0:4]}, {KV[8:12]}, {Pb}, 0")
            e(f"v_add_f32 {Ls}, {E[0]}, {E[1]}")
            e(f"v_add_f32 {Ls}, {Ls}, {Em}")
            e(f"{MF} {O[4:8]}, {KV[12:16]}, {Pb}, 0")
            e("s_nop 0")
            e(f"v_add_f32_dpp {Lt}, {Ls}, {Ls} {DPP8}")
            e(f"v_add_f32_dpp {Lu}, {Ls}, {Ls} {DPP8}")
            e(f"{MH} {O[0:4]}, {A2[0:2]}, {PM}, {O[0:4]}")
            e("s_nop 0")
            e(f"v_permlane16_swap_b32 {Lt}, {Lu}")
            e(f"{MH} {O[4:8]}, {A2[2:4]}, {PM}, {O[4:8]}")
            e(f"v_add_f32 {Ls}, {Lt}, {Lu}")
            e(f"v_add_f32 {Lt}, {Lt}, {Lu}")
            e("s_nop 1")
            e(f"v_permlane32_swap_b32 {Ls}, {Lt}")
            e("s_nop 0")
            e(f"v_add_f32 {Ls}, {Ls}, {Lt}")
            e(f"v_rcp_f32 {E[0]}, {Ls}")
            e(f"s_mov_b32 m0, {L_OB + 4096 * w}")
            for i in range(4):
                e(f"v_pk_mul_f32 {O.sub(2 * i, 2)}, {O.sub(2 * i, 2)}, {E[0:2]} op_sel_hi:[1,0]")
            for i in range(4):
                e(f"v_cvt_pk_bf16_f32 {Ost[i]}, {O[2 * i]}, {O[2 * i + 1]}")
            e(f"buffer_store_dwordx4 {Ost}, {bst}, {ws}, {oB} offen {st}")
            stamp(4)
        else:
            if w == 2:
                e.nop(p.nA)
                word(fis)
            for i in range(4, 8):
                vsm(i)
                if w == 1:
                    e(f"buffer_load_dword {pa}, {fil}, {ws}, {oFB} offen sc1")
            e.nop(8)
            fold2(accV)
            e(f"ds_write_b128 {vpw}, {fo[0:4]} offset:{L_VP}")
            if w == 1:
                gate("a", pa, fil, 0)
                e.nop(p.dA)
            e("s_waitcnt lgkmcnt(0)")
            e("s_barrier")
            last_step_exit()
            cross_off(oC, step, a1)
            e(f"s_mov_b32 m0, {L_OB + 4096 * w}")
            if w >= 2:
                zero(accO)
            if w == 3:
                e(f"s_xor_b32 {rD}, {oD}, 0x8000")
                e(f"s_xor_b32 {rA}, {oA}, 0x20000")
            if w == 2:
                e(f"s_add_u32 {a2}, {step}, 4")
                cross_off(rC, a2, a1)
                e(f"s_cmp_gt_u32 {a2}, 62")
                e(f"s_cselect_b32 {rC}, {LY.OOB >> 1}, {rC}")
            if w == 1:
                e.nop(24)
                gate("b", pb, fbl, 0)
                e.nop(p.dB)

        def issue_out():
            for k, b in enumerate(order):
                e(f"buffer_load_dwordx4 {dma}, {ws}, {oB} offen offset:{1024 * b} sc1 lds")
                if k < 3:
                    e("s_nop 3")

        def chunk_barriers():
            for c in range(4):
                e(f"s_waitcnt vmcnt({3 - c})")
                e("s_barrier")

        def retry_check():
            e(f"ds_read_b32 {t0}, {zr} offset:{L_FL}")
            if w == 1:
                e(f"ds_read_b128 {Own}, {l16} offset:{L_CP}")
            e("s_waitcnt lgkmcnt(0)")
            e(f"v_cmp_ne_u32 vcc, 0, {t0}")
            e(f"s_cbranch_vccnz {L('bretry')}")

        e("s_barrier")
        issue_out()
        e(f"s_add_u32 {step}, {step}, 1")
        e(f"s_and_b32 {a2}, {step}, 3")
        e(f"s_lshl_b32 {a2}, {a2}, 14")
        e(f"s_add_u32 {oD}, {bD}, {a2}")
        zero(accP)
        zero(accV)
        if w >= 2:
            e.label(L("bwait"))
            blocks = lambda c: [4 * q + (c ^ q) for q in range(4)]

            def rd(c):
                for b in blocks(c):
                    e(f"ds_read_b128 {T.sub(4 * b, 4)}, {l16} offset:{L_OB + 1024 * b}")
            e("s_waitcnt vmcnt(3)")
            e("s_barrier")
            rd(0)
            pending = 4
            for c in range(4):
                for i, b in enumerate(blocks(c)):
                    pending -= 1
                    e(f"s_waitcnt lgkmcnt({pending})")
                    e(f"{SM} {accO}, {T.sub(4 * b, 4)}, {WO(b)}, {idx}")
                    if c < 3 and i == 0:
                        e(f"s_waitcnt vmcnt({2 - c})")
                        e("s_barrier")
                        rd(c + 1)
                        pending += 4
            e.nop(8)
            e(f"v_pk_add_f32 {fo[0:2]}, {accO[0:2]}, {accO[2:4]}")
            e(f"v_cmpx_o_f32 vcc, {fo[0]}, {fo[1]}")
            e(f"buffer_store_dwordx2 {fo[0:2]}, {cst}, {ws}, {oC} offen sc1")
            if w == 2:
                stamp(6)
                if p.stamps:
                    e(f"s_memrealtime {ts.sub(22, 2)}")
            e("s_cmp_eq_u64 exec, -1")
            e(f"s_cbranch_scc0 {L('bslow')}")
            e.label(L("bgood"))
            e(f"ds_write_b64 {l8}, {fo[0:2]} offset:{L_CP + 512 * (w & 1)}")
            if w == 2:
                e(f"ds_write_b32 {zr}, {zr} offset:{L_FL}")
                e(f"buffer_store_dwordx4 {sent}, {cin}, {ws}, {rC} offen sc1")
            else:
                e(f"s_add_u32 {a1}, {rD}, {LY.RING_B - LY.RING_D}")
                e(f"buffer_store_dwordx4 {senz}, {own16}, {ws}, {rD} offen {st}")
                e(f"buffer_store_dwordx4 {sent}, {own16}, {ws}, {a1} offen {st}")
                e(f"buffer_store_dwordx4 {sent}, {ownA}, {ws}, {rA} offen {st}")
                e(f"buffer_store_dwordx4 {sent}, {ownA2}, {ws}, {rA} offen offset:1024 {st}")
            e("s_waitcnt lgkmcnt(0)")
            e("s_barrier")
            if w == 3 and p.nD >= 0:
                e.nop(p.nD)
                word(fbs, 2048)
            if w == 2:
                e.nop(48)
                gate("s", pd, fbl, 2048)
                e.nop(p.dD)
        elif w == 0:
            e(f"s_add_u32 {oKV}, {oKV}, 0x40000")
            e(f"v_subrev_u32 {fmv}, 1, {stv}")
            if p.flags:
                e(f"s_min_u32 {a0}, {kv[0]}, {kv[1]}")
                e(f"s_add_u32 {a1}, {step}, 2")
                e(f"s_min_u32 {a1}, {a1}, 63")
                e(f"s_cmp_gt_u32 {a0}, {a1}")
                e(f"s_cbranch_scc1 {L('kvfresh')}")
                load_kv_words()
                e.label(L("kvfresh"))
            for c in range(4):
                e(f"s_waitcnt vmcnt({3 - c + (1 if c > p.cann else 0)})")
                e("s_barrier")
                if c == p.cann:
                    e.nop(p.dN)
                    e(f"buffer_store_dword {stv}, {fcs}, {ws}, {oFC} offen sc1")
            stamp(5)
            if p.far:
                wait_kv(L("kv"))
                prefetch_kv()
                publish_km()
                e(f"buffer_store_dword {fmv}, {fms}, {ws}, 0 offen sc1")
            e(f"s_add_u32 {oKM}, {oKM}, 0x10000")
            e.label(L("bjoin"))
            e("s_barrier")
            retry_check()
            e("s_waitcnt vmcnt(0)")
        else:
            def poll():
                if p.csep == 4:
                    e(f"s_load_dwordx4 {cf}, {ws[0:2]}, {oFS[0]} glc")
                else:
                    for k in range(3):
                        e(f"s_load_dword {cf[k]}, {ws[0:2]}, {oFS[k]} glc")
            for c in range(4):
                e(f"s_waitcnt vmcnt({3 - c})")
                e("s_barrier")
                if c == 2:
                    poll()
            e.label(L("cpoll"))
            poll()
            for _ in range(3):
                e(f"s_min_u32 {a0}, {cf[0]}, {cf[1]}")
                e(f"s_min_u32 {a0}, {a0}, {cf[2]}")
                e(f"s_cmp_ge_u32 {a0}, {step}")
                e(f"s_cbranch_scc1 {L('cgo')}")
            e(f"s_waitcnt lgkmcnt({8 if p.csep == 4 else 12})")
            e(f"s_add_u32 {spin}, {spin}, 1")
            e(f"s_cmp_lt_u32 {spin}, {SPIN_MAX}")
            e(f"s_cbranch_scc1 {L('cpoll')}")
            e(f"s_branch {dead}")
            e.label(L("cgo"))
            e.nop(p.dF)
            stamp(7)

            def cloads():
                for k in range(3):
                    e(f"buffer_load_dwordx4 {Cx.sub(4 * k, 4)}, {cld[k]}, {ws}, {oC} offen sc1")

            def csum():
                for k in range(3):
                    e(f"s_waitcnt vmcnt({2 - k})")
                    src = Own if k == 0 else Cs
                    e(f"v_pk_add_f32 {Cs[0:2]}, {src[0:2]}, {Cx.sub(4 * k, 2)}")
                    e(f"v_pk_add_f32 {Cs[2:4]}, {src[2:4]}, {Cx.sub(4 * k + 2, 2)}")

            def cpack():
                e(f"v_cvt_pk_bf16_f32 {Dp[0]}, {Cs[0]}, {Cs[2]}")
                e(f"v_cvt_pk_bf16_f32 {Dp[1]}, {Cs[1]}, {Cs[3]}")
                e(f"v_max_i32 {Dp[0]}, {sz1}, {Dp[0]}")
                e(f"v_max_i32 {Dp[1]}, {sz1}, {Dp[1]}")

            cloads()
            e.label(L("bjoin"))
            e("s_barrier")
            retry_check()
            csum()
            e(f"v_pk_add_f32 {fo[0:2]}, {Cs[0:2]}, {Cs[2:4]}")
            e(f"v_cmp_u_f32 vcc, {fo[0]}, {fo[1]}")
            cpack()
            e(f"s_cbranch_vccnz {L('cslow')}")
            e.label(L("cgood"))
            if p.nD < 0:
                word(fbs, 2048)
            e(f"buffer_store_dword {Dp[0]}, {dst}, {ws}, {oD} offen {st}")
            e(f"buffer_store_dword {Dp[1]}, {dst}, {ws}, {oD} offen offset:16 {st}")
            stamp(8)
        e("s_barrier")
        if w == 0:
            stamp(9)
        issue(oD)
        e(f"s_branch {L('loop')}")

        gather_wait("d", oD, accP, WP, 6, 4, 0)
        if w >= 2:
            e.label(L("bslow"))
            e("s_mov_b64 exec, -1")
            e(f"v_max_u32 {mx}, {T[0]}, {T[1]}")
            for q in range(1, 32):
                e(f"v_max3_u32 {mx}, {mx}, {T[2 * q]}, {T[2 * q + 1]}")
            e(f"v_cmp_eq_u32 vcc, -1, {mx}")
            e(f"s_cbranch_vccnz {L('bagain')}")
            e(f"buffer_store_dwordx2 {fo[0:2]}, {cst}, {ws}, {oC} offen sc1")
            e(f"s_branch {L('bgood')}")
            e.label(L("bagain"))
            count_fail(2)
            if w == 2:
                e(f"ds_write_b32 {zr}, {sent[0]} offset:{L_FL}")
            zero(accO)
            spin_check()
            e("s_waitcnt lgkmcnt(0)")
            e("s_barrier")
            issue_out()
            e(f"s_branch {L('bwait')}")
        else:
            e.label(L("bretry"))
            spin_check()
            e(f"s_mov_b32 m0, {L_OB + 4096 * w}")
            e("s_nop 0")
            issue_out()
            chunk_barriers()
            e(f"s_branch {L('bjoin')}")
        if w == 0:
            e.label(L("abad"))
            e(f"v_max3_u32 {mx}, {XM[0]}, {XM[1]}, {XM[2]}")
            e(f"v_max_u32 {mx}, {mx}, {XM[3]}")
            for q in range(6):
                e(f"v_max3_u32 {mx}, {mx}, {X[2 * q]}, {X[2 * q + 1]}")
            e(f"v_cmp_eq_u32 vcc, -1, {mx}")
            aloads()
            count_fail(1)
            spin_check()
            e(f"s_cbranch_vccnz {L('atry')}")
            e(f"v_max3_f32 {mx}, {Sx[0]}, {Sx[1]}, {Sx[2]}")
            e(f"v_max3_f32 {mx}, {mx}, {Sx[3]}, {Sx[4]}")
            e.nop(2)
            e(f"v_max_f32_dpp {Lt}, {mx}, {mx} {DPP8}")
            e(f"v_max_f32_dpp {Lu}, {mx}, {mx} {DPP8}")
            e.nop(2)
            e(f"v_permlane16_swap_b32 {Lt}, {Lu}")
            e.nop(2)
            e(f"v_max_f32 {mx}, {Lt}, {Lu}")
            e(f"v_max_f32 {Lt}, {Lt}, {Lu}")
            e.nop(2)
            e(f"v_permlane32_swap_b32 {mx}, {Lt}")
            e.nop(2)
            e(f"v_max_f32 {mx}, {mx}, {Lt}")
            for i in range(5):
                e(f"v_sub_f32 {Sx[i]}, {Sx[i]}, {mx}")
            exps()
            e(f"s_branch {L('agood')}")
        if w == 1:
            e.label(L("cslow"))
            count_fail(3)
            e(f"v_max_u32 {mx}, {Cx[0]}, {Cx[1]}")
            for q in range(1, 6):
                e(f"v_max3_u32 {mx}, {mx}, {Cx[2 * q]}, {Cx[2 * q + 1]}")
            e(f"v_cmp_eq_u32 vcc, -1, {mx}")
            e(f"s_cbranch_vccz {L('cgood')}")
            cloads()
            spin_check()
            csum()
            cpack()
            e(f"s_branch {L('cslow')}")

        e.label(L("done"))
        if w == 0:
            publish_km()
            e("s_waitcnt vmcnt(0)")
            e(f"buffer_store_dword {stv}, {fms}, {ws}, 0 offen sc1")
        if p.stamps and w < 3:
            e(f"s_lshl_b32 {a0}, {sx}, 5")
            e(f"s_add_u32 {a0}, {a0}, {sj}")
            e(f"s_lshl_b32 {a0}, {a0}, 14")
            e(f"s_add_u32 {a0}, {a0}, {LY.STAMPS + 4096 * w}")
            e("s_waitcnt vmcnt(0) lgkmcnt(0)")
            for i in range(4):
                e(f"ds_read_b128 {T.sub(4 * i, 4)}, {l16} offset:{L_ST + 8192 * w + 1024 * i}")
            e("s_waitcnt lgkmcnt(0)")
            for i in range(4):
                e(f"buffer_store_dwordx4 {T.sub(4 * i, 4)}, {l16}, {ws}, {a0} offen offset:{1024 * i}")
            e("s_waitcnt vmcnt(0)")
        e(f"s_branch {dead}")
```

```python
class Regs:
    def __init__(self, prefix, lo, hi):
        self.prefix, self.next, self.hi = prefix, lo, hi
        self.names = {}

    def alloc(self, name, n=1, align=1):
        base = (self.next + align - 1) // align * align
        assert base + n <= self.hi, f"out of {self.prefix} registers at {name}"
        self.next = base + n
        r = R(self.prefix, base, n)
        self.names[name] = r
        return r


class R:
    def __init__(self, prefix, base, n):
        self.prefix, self.base, self.n = prefix, base, n

    def __getitem__(self, i):
        if isinstance(i, slice):
            lo = i.start or 0
            hi = i.stop if i.stop is not None else self.n
            assert 0 <= lo < hi <= self.n, (lo, hi, self.n)
            return R(self.prefix, self.base + lo, hi - lo)
        assert 0 <= i < self.n, (i, self.n)
        return R(self.prefix, self.base + i, 1)

    def sub(self, lo, n):
        return self[lo:lo + n]

    def __str__(self):
        if self.n == 1:
            return f"{self.prefix}{self.base}"
        return f"{self.prefix}[{self.base}:{self.base + self.n - 1}]"

    __repr__ = __str__
    __format__ = lambda self, spec: str(self)


class Emit:
    def __init__(self):
        self.lines = []
        self.uid = 0

    def __call__(self, s):
        for l in s.split("\n"):
            l = l.strip()
            if l:
                self.lines.append(l if l.endswith(":") else "    " + l)

    def label(self, name):
        self.lines.append(name + ":")

    def new_label(self, stem):
        self.uid += 1
        return f"L_{stem}_{self.uid}"

    def nop(self, states):
        while states > 0:
            k = min(states, 16)
            self(f"s_nop {k - 1}")
            states -= k

    def text(self):
        return "\n".join(self.lines)
```

```python
WS_RECORDS = 0x0F000000
RING_C = 0x8000000
RING_D = 0x200000
RING_B = 0x240000
RING_A = 0x280000
FLAGS = 0x380000
STAMPS = 0x000000
KM = 0x400000
VM = 0x800000
KX = 0x1000000
VX = 0x2000000
QX = 0x3000000
OX = 0x4000000
PART = 0x5200000
FK = 0x390000
FO = 0x396000
FP = 0x394000
TIMES = 0x3A0000
OOB = 0x80000000
```

```python
from emit import Regs, R

M32 = "v_mfma_f32_32x32x16_bf16"
M16 = "v_mfma_f32_16x16x32_bf16"
WAVE_BYTES = 21888
COPY = 4160
U_OFF = 4 * COPY + 80
LOG2E = 0x3FB8AA3B
INV2PI = 0x3E22F983


def emit_partb(e, S, tag, base, hook=lambda n: None, vlo=8):
    v = Regs("v", vlo, 256)
    tid = R("v", 0, 1)
    lane, t0, t1, t2, t3, ua, rowa = (v.alloc(n) for n in "lane t0 t1 t2 t3 ua rowa".split())
    Uraw = v.alloc("Uraw", 16, 2)
    G = v.alloc("G", 128, 2)
    s = S["alloc"]
    mark = s.next
    srd = s.alloc(tag + "srd", 4, 4)
    pp = s.alloc(tag + "pp", 16, 4)
    dsk = s.alloc(tag + "dsk", 4, 2)
    a0, a1, wb, cnt, sel0, sel1, hmask = (s.alloc(tag + n) for n in "a0 a1 wb cnt sel0 sel1 hmask".split())
    sw, cu = S["w"], S["cu"]
    L = lambda n: f"L_{tag}_{n}"

    e(f"s_load_dwordx16 {pp}, s[0:1], 64")
    e(f"s_load_dwordx2 {srd[0:2]}, s[0:1], 56")
    e(f"s_mul_i32 {wb}, {sw}, {WAVE_BYTES}")
    e(f"s_add_u32 {wb}, {wb}, {base}")
    e(f"v_and_b32 {lane}, 63, {tid}")
    e(f"s_lshl_b32 {a0}, {cu}, 2")
    e(f"s_add_u32 {a0}, {a0}, {sw}")
    e(f"s_lshl_b32 {a1}, {a0}, 8")
    e(f"v_lshl_add_u32 {t0}, {lane}, 2, {a1}")
    e(f"s_lshl_b32 {a1}, {a0}, 1")
    e(f"v_mov_b32 {t1}, {a1}")
    e(f"s_mov_b32 {srd[2]}, {4 << 20}")
    e(f"s_mov_b32 {srd[3]}, 0x20000")
    e(f"s_mov_b32 {sel0}, 0x05040100")
    e(f"s_mov_b32 {sel1}, 0x07060302")
    e(f"s_mov_b32 {hmask}, 0xffff0000")
    e(f"v_lshlrev_b32 {rowa}, 14, {tid}")
    e(f"s_lshl_b32 {a1}, {cu}, 3")
    e("s_waitcnt lgkmcnt(0)")
    P = G[0:6]
    for i in range(6):
        e(f"global_load_dword {P[i]}, {t0}, {pp.sub(2 * i, 2)}")
    e(f"global_load_ushort {G[6]}, {t1}, {pp[12:14]}")
    e(f"s_load_dwordx2 {dsk[0:2]}, {pp[14:16]}, {a1}")
    for r in range(8):
        if r and r % 2 == 0:
            e(f"s_add_u32 {a1}, {a1}, 4096")
        e(f"buffer_load_dwordx2 {Uraw.sub(2 * r, 2)}, {rowa}, {srd}, {a1} offen offset:{2048 * (r & 1)}")
    hook(0)
    Lg = G[112:120]
    n_, g_ = t2, t3
    e(f"v_and_b32 {n_}, 15, {lane}")
    e(f"v_lshrrev_b32 {g_}, 4, {lane}")
    e(f"v_cvt_f32_u32 {Lg[0]}, {n_}")
    e(f"v_mul_f32 {Lg[6]}, 0x41800000, {Lg[0]}")
    e(f"v_lshl_add_u32 {t0}, {n_}, 1, 0")
    e(f"v_add_u32 {t0}, 256, {t0}")
    e(f"v_and_b32 {t1}, 3, {n_}")
    e(f"v_lshlrev_b32 {t1}, 2, {t1}")
    e(f"v_lshrrev_b32 {ua}, 2, {n_}")
    e(f"v_lshl_add_u32 {t1}, {ua}, 8, {t1}")
    e(f"v_cmp_gt_u32 vcc, 8, {n_}")
    e.nop(2)
    e(f"v_cndmask_b32 {t0}, {t1}, {t0}, vcc")
    e(f"v_cvt_f32_u32 {Lg[2]}, {t0}")
    e(f"v_and_b32 {t0}, 1, {n_}")
    e(f"v_lshlrev_b32 {t0}, 3, {t0}")
    e(f"v_lshrrev_b32 {t1}, 1, {n_}")
    e(f"v_min_u32 {t1}, 4, {t1}")
    e(f"v_lshl_add_u32 {t0}, {t1}, 8, {t0}")
    e(f"v_add_u32 {t0}, 1024, {t0}")
    e(f"v_cvt_f32_u32 {Lg[4]}, {t0}")
    e("s_waitcnt vmcnt(8)" if not getattr(hook, "extra0", 0) else f"s_waitcnt vmcnt({8 + hook.extra0})")
    dt = G[7]
    e(f"v_lshlrev_b32 {dt}, 16, {G[6]}")
    e(f"v_mul_f32 {dt}, {LOG2E:#x}, {dt}")
    e(f"v_exp_f32 {dt}, {dt}")
    e.nop(1)
    e(f"v_cvt_pk_bf16_f32 {dt}, {dt}, {dt}")
    e(f"v_and_b32 {dt}, {hmask}, {dt}")
    e(f"v_lshl_add_u32 {t0}, {lane}, 5, {wb}")
    for hf in range(2):
        x = G[8:14]
        for i in range(6):
            e(f"v_lshlrev_b32 {x[i]}, 16, {P[i]}" if hf == 0 else f"v_and_b32 {x[i]}, {hmask}, {P[i]}")
        o = G.sub(16 + 4 * hf, 4)
        for i in range(4):
            e(f"v_mul_f32 {x[i]}, {dt}, {x[i]}")
        e(f"v_mul_f32 {o[0]}, {LOG2E:#x}, {x[0]}")
        e(f"v_mul_f32 {o[1]}, {INV2PI:#x}, {x[1]}")
        e(f"v_mul_f32 {o[2]}, {x[4]}, {x[2]}")
        e(f"v_fma_f32 {o[2]}, -{x[5]}, {x[3]}, {o[2]}")
        e(f"v_mul_f32 {o[3]}, {x[4]}, {x[3]}")
        e(f"v_fma_f32 {o[3]}, {x[5]}, {x[2]}, {o[3]}")
        e(f"ds_write_b128 {t0}, {o} offset:{COPY + 16 * hf}")
    PR, FR, AC, X = G[0:16], G[16:32], G[32:44], G[44:76]
    for i in range(12):
        e(f"v_mov_b32 {AC[i]}, 0")
    pa = ua
    e(f"v_lshl_add_u32 {pa}, {g_}, 6, {wb}")
    e(f"s_mov_b32 {cnt}, 0")
    e("s_waitcnt lgkmcnt(0)")
    e.label(L("kg"))
    for q in range(4):
        e(f"ds_read_b128 {PR.sub(4 * q, 4)}, {pa} offset:{COPY + 16 * q}")
    e(f"v_add_u32 {pa}, 256, {pa}")
    for q in range(4):
        e(f"s_waitcnt lgkmcnt({3 - q})")
        pr = PR.sub(4 * q, 4)
        xs = [X.sub(4 * t, 4) for t in range(4)]
        for t in range(4):
            e(f"v_pk_mul_f32 {xs[t][0:2]}, {pr[0:2]}, {Lg.sub(2 * t, 2)} op_sel_hi:[1,0]")
        for t in range(4):
            e(f"v_fract_f32 {xs[t][1]}, {xs[t][1]}")
        for t in range(4):
            e(f"v_exp_f32 {xs[t][0]}, {xs[t][0]}")
            e(f"v_cos_f32 {xs[t][2]}, {xs[t][1]}")
            e(f"v_sin_f32 {xs[t][3]}, {xs[t][1]}")
        for t in range(4):
            e(f"v_pk_mul_f32 {xs[t][2:4]}, {xs[t][2:4]}, {xs[t][0:2]} op_sel_hi:[1,0]")
        z = xs[3]
        e(f"v_pk_mul_f32 {z[0:2]}, {z[2:4]}, {pr[2:4]} op_sel_hi:[0,1] neg_hi:[0,1]")
        for t in range(3):
            e(f"v_cvt_pk_bf16_f32 {FR[4 * t + q]}, {xs[t][2]}, {xs[t][3]}")
        e(f"v_pk_fma_f32 {z[0:2]}, {z[2:4]}, {pr[2:4]}, {z[0:2]} op_sel:[1,1,0] op_sel_hi:[1,0,1] neg_lo:[0,1,0] neg_hi:[0,1,0]")
        e(f"v_cvt_pk_bf16_f32 {FR[12 + q]}, {z[0]}, {z[1]}")
    e(f"s_add_u32 {cnt}, {cnt}, 1")
    e(f"s_cmp_lt_u32 {cnt}, 8")
    for t in range(3):
        e(f"{M16} {AC.sub(4 * t, 4)}, {FR.sub(4 * t, 4)}, {FR[12:16]}, {AC.sub(4 * t, 4)}")
    e(f"s_cbranch_scc1 {L('kg')}")
    hook(1)
    e(f"v_lshlrev_b32 {t0}, 5, {n_}")
    e(f"v_lshl_add_u32 {t0}, {g_}, 3, {t0}")
    e(f"v_add_u32 {t0}, {wb}, {t0}")
    e(f"v_lshlrev_b32 {t1}, 4, {n_}")
    e(f"v_lshl_add_u32 {t1}, {g_}, 3, {t1}")
    e(f"v_lshlrev_b32 {ua}, 3, {n_}")
    e(f"v_lshl_add_u32 {ua}, {g_}, 7, {ua}")
    e(f"v_cmp_gt_u32 vcc, 2, {g_}")
    e.nop(2)
    e(f"v_cndmask_b32 {t1}, {ua}, {t1}, vcc")
    e(f"v_add_u32 {t1}, {wb}, {t1}")
    e(f"v_lshlrev_b32 {ua}, 2, {n_}")
    e(f"v_lshl_add_u32 {ua}, {g_}, 7, {ua}")
    e(f"v_add_u32 {ua}, {wb}, {ua}")
    for i in range(6):
        e(f"v_cvt_pk_bf16_f32 {X[i]}, {AC[2 * i]}, {AC[2 * i + 1]}")
    e(f"ds_write_b64 {t0}, {X[0:2]}")
    e(f"ds_write_b64 {t1}, {X[2:4]} offset:512")
    e(f"ds_write_b32 {ua}, {X[4]} offset:1024")
    e(f"ds_write_b32 {ua}, {X[5]} offset:1088")
    e(f"v_lshrrev_b32 {t0}, 2, {tid}")
    e(f"v_mul_u32_u24 {t0}, 80, {t0}")
    e(f"v_and_b32 {t1}, 3, {tid}")
    e(f"v_lshl_add_u32 {ua}, {t1}, 4, {t0}")
    e(f"v_add_u32 {ua}, {base + U_OFF}, {ua}")
    e(f"v_add_u32 {G[127]}, {2 * WAVE_BYTES}, {ua}")
    uaddr = lambda c: (ua if c < 2 else G[127], (c & 1) * WAVE_BYTES)
    e("s_waitcnt vmcnt(0)" if not getattr(hook, "extra1", 0) else f"s_waitcnt vmcnt({hook.extra1})")
    for c in range(4):
        d = X.sub(8 + 4 * c, 4)
        for i in range(4):
            e(f"v_perm_b32 {d[i]}, {Uraw[4 * i + 2 + (c >> 1)]}, {Uraw[4 * i + (c >> 1)]}, {sel1 if c & 1 else sel0}")
        e(f"ds_write_b128 {uaddr(c)[0]}, {d} offset:{uaddr(c)[1]}")
    D = G[0:32]
    Z = G[32:44]
    e(f"v_lshlrev_b32 {t0}, 3, {lane}")
    e(f"v_sub_u32 {t0}, 2047, {t0}")
    e(f"v_cvt_f32_u32 {t1}, {t0}")
    e(f"s_sub_u32 {a0}, {wb}, {2 * (0x4300 - 128)}")
    e("s_waitcnt lgkmcnt(0)")
    for wv in range(4):
        ad = X[0:8]
        for i in range(4):
            k = 512 * wv + 2 * i
            e(f"v_subrev_f32 {Z[0]}, {f32(k)}, {t1}")
            e(f"v_subrev_f32 {Z[1]}, {f32(k + 1)}, {t1}")
            e(f"v_cvt_pk_bf16_f32 {Z[2]}, {Z[0]}, {Z[1]}")
            e(f"v_and_b32 {Z[0]}, 0xffff, {Z[2]}")
            e(f"v_lshrrev_b32 {Z[1]}, 16, {Z[2]}")
            if wv == 3:
                for h in range(2):
                    e(f"v_subrev_u32 {Z[2]}, {k + h}, {t0}")
                    e(f"v_min_u32 {Z[2]}, 128, {Z[2]}")
                    e(f"v_add_u32 {Z[2]}, {0x4300 - 128}, {Z[2]}")
                    e(f"v_max_u32 {Z[h]}, {Z[h]}, {Z[2]}")
            e(f"v_lshl_add_u32 {ad[2 * i]}, {Z[0]}, 1, {a0}")
            e(f"v_lshl_add_u32 {ad[2 * i + 1]}, {Z[1]}, 1, {a0}")
        e("s_waitcnt lgkmcnt(0)")
        for i in range(4):
            e(f"ds_read_u16 {D[8 * wv + i]}, {ad[2 * i]}")
            e(f"ds_read_u16 {D[8 * wv + 4 + i]}, {ad[2 * i + 1]}")
    ca = t0
    e(f"v_lshl_add_u32 {ca}, {lane}, 4, {wb}")
    for i in range(4):
        e(f"v_mov_b32 {Z[i]}, 0")
    e(f"v_lshrrev_b32 {t1}, 2, {lane}")
    e(f"v_mul_u32_u24 {t1}, {COPY - 64}, {t1}")
    e(f"v_add_u32 {t1}, 4096, {t1}")
    e(f"v_cmp_gt_u32 vcc, 16, {lane}")
    e(f"v_mov_b32 {t2}, {4 * COPY - 256}")
    e("s_nop 0")
    e(f"v_cndmask_b32 {t1}, {t2}, {t1}, vcc")
    e(f"v_add_u32 {t1}, {t1}, {ca}")
    e("s_waitcnt lgkmcnt(0)")
    e("s_mov_b64 exec, 0x1fffff")
    e(f"ds_write_b128 {t1}, {Z[0:4]}")
    e("s_mov_b64 exec, -1")
    for wv in range(4):
        for i in range(4):
            e(f"v_lshl_or_b32 {D[8 * wv + i]}, {D[8 * wv + 4 + i]}, 16, {D[8 * wv + i]}")
        e(f"ds_write_b128 {ca}, {D.sub(8 * wv, 4)} offset:{3 * COPY + 1024 * wv}")
    e("s_waitcnt lgkmcnt(0)")
    for wv in range(4):
        e(f"ds_read_b64 {D.sub(8 * wv + 4, 2)}, {ca} offset:{3 * COPY + 1024 * wv + 16}")
    for wv in range(4):
        d = D.sub(8 * wv, 8)
        zz = X.sub(12 * (wv & 1), 12)
        if wv == 0:
            e("s_waitcnt lgkmcnt(0)")
        for i in range(4):
            e(f"v_alignbit_b32 {zz[i]}, {d[i + 1]}, {d[i]}, 16")
            e(f"v_mov_b32 {zz[4 + i]}, {d[i + 1]}")
            e(f"v_alignbit_b32 {zz[8 + i]}, {d[i + 2]}, {d[i + 1]}, 16")
        for k in range(3):
            e(f"ds_write_b128 {ca}, {zz.sub(4 * k, 4)} offset:{(2 - k) * COPY + 1024 * wv}")
    aa, b1, b0, b0c = t0, t1, t2, t3
    e(f"v_and_b32 {b1}, 3, {lane}")
    e(f"v_mul_u32_u24 {aa}, {COPY}, {b1}")
    e(f"v_bfe_u32 {b1}, {lane}, 3, 1")
    e(f"v_bfe_u32 {b0}, {lane}, 2, 1")
    e(f"v_lshl_add_u32 {b1}, {b0}, 1, {b1}")
    e(f"v_bfe_u32 {b0}, {lane}, 4, 1")
    e(f"v_lshl_add_u32 {b1}, {b0}, 2, {b1}")
    e(f"v_lshlrev_b32 {b1}, 3, {b1}")
    e(f"v_sub_u32 {aa}, {aa}, {b1}")
    e(f"v_lshrrev_b32 {b0}, 5, {lane}")
    e(f"v_lshl_add_u32 {aa}, {b0}, 4, {aa}")
    e(f"s_add_u32 {a0}, {wb}, {2 * 2044 - 2048}")
    e(f"v_add_u32 {aa}, {a0}, {aa}")
    e(f"v_and_b32 {b1}, 31, {lane}")
    e(f"v_mul_u32_u24 {b1}, 80, {b1}")
    e(f"v_lshl_add_u32 {b0}, {b0}, 4, {b1}")
    e(f"s_add_u32 {a0}, {wb}, {U_OFF}")
    e(f"v_add_u32 {b0}, {a0}, {b0}")
    e(f"v_mov_b32 {G[126]}, {b0}")
    e(f"v_mov_b32 {b0c}, {b0}")
    e(f"s_sub_u32 {a1}, {a0}, 80")
    Y = [G[0:16], G[16:32]]
    SET = [G[32:48], G[48:64]]
    for i in range(32):
        e(f"v_mov_b32 {G[i]}, 0")

    def reads(k):
        st, off = SET[k], (32 if k == 0 else 0)
        e(f"ds_read_b64 {st[0:2]}, {aa} offset:{2048 + off}")
        e(f"ds_read_b64 {st[2:4]}, {aa} offset:{2048 + off + 8}")
        e(f"ds_read_b128 {st[8:12]}, {b0} offset:{2560 + off}")
        e(f"ds_read_b128 {st[12:16]}, {b0c} offset:{off}")
        e(f"ds_read_b64 {st[4:6]}, {aa} offset:{off}")
        e(f"ds_read_b64 {st[6:8]}, {aa} offset:{off + 8}")

    def prods(k, mid=()):
        st = SET[k]
        e("s_waitcnt lgkmcnt(6)")
        e(f"{M32} {Y[1]}, {st[0:4]}, {st[8:12]}, {Y[1]}")
        for x in mid:
            e(x)
        e(f"{M32} {Y[0]}, {st[0:4]}, {st[12:16]}, {Y[0]}")
        e(f"{M32} {Y[1]}, {st[4:8]}, {st[12:16]}, {Y[1]}")

    e("s_waitcnt lgkmcnt(0)")
    e("s_barrier")
    hook(2)
    reads(0)
    for part in range(2):
        e(f"s_mov_b32 {cnt}, 0")
        e.label(L(f"cv{part}"))
        reads(1)
        prods(0, [f"v_subrev_u32 {aa}, 64, {aa}", f"v_subrev_u32 {b0}, 80, {b0}", f"v_max_i32 {b0c}, {a1}, {b0}"])
        reads(0)
        prods(1, [f"s_add_u32 {cnt}, {cnt}, 1", f"s_cmp_lt_u32 {cnt}, 16"])
        e(f"s_cbranch_scc1 {L(f'cv{part}')}")
        hook(3 + part)
    e(f"s_load_dwordx2 {srd[0:2]}, s[0:1], 128")
    e(f"s_mov_b32 {srd[2]}, {8 << 20}")
    e(f"s_mov_b32 {srd[3]}, 0x20000")
    e(f"s_lshl_b32 {dsk[2]}, {dsk[1]}, 16")
    e(f"s_and_b32 {dsk[3]}, {dsk[1]}, {hmask}")
    e(f"s_and_b32 {dsk[1]}, {dsk[0]}, {hmask}")
    e(f"s_lshl_b32 {dsk[0]}, {dsk[0]}, 16")
    e(f"v_lshlrev_b32 {rowa}, 1, {rowa}")
    e(f"s_lshl_b32 {a1}, {cu}, 3")
    e(f"s_add_u32 {a1}, {a1}, 2048")
    e("s_waitcnt lgkmcnt(0)")
    e.nop(2)
    PK = G[64:80]
    for t in range(2):
        for i in range(8):
            e(f"v_cvt_pk_bf16_f32 {PK[8 * t + i]}, {Y[t][2 * i]}, {Y[t][2 * i + 1]}")
        for q in range(2):
            e(f"ds_write_b128 {G[126]}, {PK.sub(8 * t + 4 * q, 4)} offset:{2560 * t + 32 * q}")
    e("s_waitcnt lgkmcnt(0)")
    e("s_barrier")
    YC = G[0:16]
    for c in range(4):
        e(f"ds_read_b128 {YC.sub(4 * c, 4)}, {uaddr(c)[0]} offset:{uaddr(c)[1]}")
    SK = G[16:48]
    for r in range(8):
        for h in range(2):
            u, d = Uraw[2 * r + h], SK.sub(4 * r + 2 * h, 2)
            e(f"v_lshlrev_b32 {d[0]}, 16, {u}")
            e(f"v_and_b32 {d[1]}, {hmask}, {u}")
            e(f"v_pk_mul_f32 {d}, {d}, {dsk.sub(2 * h, 2)}")
            e(f"v_cvt_pk_bf16_f32 {u}, {d[0]}, {d[1]}")
            e(f"v_lshlrev_b32 {d[0]}, 16, {u}")
            e(f"v_and_b32 {d[1]}, {hmask}, {u}")
    e("s_waitcnt lgkmcnt(0)")
    yy = G[48:52]
    for r in range(8):
        for c in range(4):
            src = YC[4 * c + (r >> 1)]
            e(f"v_and_b32 {yy[c]}, {hmask}, {src}" if r & 1 else f"v_lshlrev_b32 {yy[c]}, 16, {src}")
        for h in range(2):
            d = SK.sub(4 * r + 2 * h, 2)
            e(f"v_pk_add_f32 {d}, {d}, {yy.sub(2 * h, 2)}")
            e(f"v_cvt_pk_bf16_f32 {Uraw[2 * r + h]}, {d[0]}, {d[1]}")
        e(f"buffer_store_dwordx2 {Uraw.sub(2 * r, 2)}, {rowa}, {srd}, {a1} offen")
        e(f"s_add_u32 {a1}, {a1}, 4096")
    s.next = mark


def f32(x):
    import struct
    return f"{struct.unpack('<I', struct.pack('<f', float(x)))[0]:#x}"
```

```python
from emit import Regs, R
import layout as LY

M32 = "v_mfma_f32_32x32x16_bf16"
M8 = "v_mfma_f32_32x32x8_bf16"
XBUF = 66048
OBUF = 65536
SCALE_LOG2E = 0x3E0293EE
SPIN_MAX = 400000


def emit_proj(e, S, p, role, tag, before_main=None, after_main=None):
    v = Regs("v", 0, 256)
    tid, lane, l16, t0, t1, t2, fsw, oob, fad, fval = (v.alloc(n) for n in
        "tid lane l16 t0 t1 t2 fsw oob fad fval".split())
    xr = v.alloc("xr", 2)
    kma, vma, osta = (v.alloc(n) for n in ("kma", "vma", "osta"))
    ring = v.alloc("ring", 32, 2)
    acc = [v.alloc(f"acc{i}", 16, 2) for i in range(2)]
    G = v.alloc("G", 176, 2)
    pk = G[0:8]
    W = R("a", 0, 256)
    ws, tsrd = S["ws"], S["tsrd"]
    sj, sw = S["j"], S["w"]
    s = S["alloc"]
    src = s.alloc(tag + "src", 4, 4)
    seg, a0, a1, a2, oX, oL, oY, oF, spin, oS, pre = (s.alloc(tag + n) for n in
        "seg a0 a1 a2 oX oL oY oF spin oS pre".split())
    fl = s.alloc(tag + "fl", 16, 4)
    dead = S["exit"]
    isO = role == "O"
    BUF = OBUF if isO else XBUF
    L = lambda n: f"L_{tag}_{n}"

    def spin_check():
        e(f"s_add_u32 {spin}, {spin}, 1")
        e(f"s_cmp_gt_u32 {spin}, {SPIN_MAX}")
        e(f"s_cbranch_scc1 {dead}")

    def consts():
        e(f"v_and_b32 {lane}, 63, {tid}")
        e(f"v_lshlrev_b32 {l16}, 4, {lane}")
        e(f"v_bfrev_b32 {oob}, 1")
        e(f"s_mov_b32 {spin}, 0")
        e(f"v_and_b32 {t2}, 0x13, {lane}")
        e(f"v_bfe_u32 {t0}, {lane}, 2, 1")
        e(f"v_lshl_add_u32 {t2}, {t0}, 3, {t2}")
        e(f"v_bfe_u32 {t0}, {lane}, 3, 1")
        e(f"v_lshl_add_u32 {t2}, {t0}, 2, {t2}")
        e(f"v_lshrrev_b32 {t1}, 5, {lane}")
        e(f"v_lshlrev_b32 {t0}, 9, {t1}")
        e(f"v_lshl_add_u32 {fsw}, {t2}, 4, {t0}")
        if isO:
            e(f"v_mov_b32 {xr[0]}, {l16}")
        else:
            if role != "V":
                e(f"v_and_b32 {t0}, 31, {lane}")
            e(f"v_mul_u32_u24 {t0}, 2064, {t2 if role == 'V' else t0}")
            e(f"v_lshl_add_u32 {xr[0]}, {t1}, 4, {t0}")
        e(f"v_add_u32 {xr[1]}, {BUF}, {xr[0]}")
        if role in "KV":
            e(f"s_lshl_b32 {a0}, {sj}, 7")
            e(f"s_add_u32 {a0}, {a0}, {LY.FK + (16 if role == 'V' else 0)}")
            e(f"s_lshl_b32 {a1}, {sw}, 2")
        elif role == "Q":
            e(f"s_lshl_b32 {a0}, {sj}, 4")
            e(f"s_add_u32 {a0}, {a0}, {LY.FO}")
            e(f"s_lshl_b32 {a1}, {sw}, 2")
        else:
            e(f"s_and_b32 {a0}, {sj}, 7")
            e(f"s_lshl_b32 {a0}, {a0}, 2")
            e(f"s_add_u32 {a0}, {a0}, {sw}")
            e(f"s_lshl_b32 {a0}, {a0}, 7")
            e(f"s_add_u32 {a0}, {a0}, {LY.FP}")
            e(f"s_mov_b32 {oS}, {a0}")
            e(f"s_lshr_b32 {a1}, {sj}, 3")
            e(f"s_lshl_b32 {a1}, {a1}, 2")
        e(f"s_add_u32 {a0}, {a0}, {a1}")
        e(f"v_mov_b32 {t0}, {a0}")
        e(f"v_cmp_eq_u32 vcc, 0, {lane}")
        e(f"v_mov_b32 {fval}, 0")
        e("s_nop 0")
        e(f"v_cndmask_b32 {fad}, {oob}, {t0}, vcc")

    consts()
    e(f"buffer_store_dword {fval}, {fad}, {ws}, 0 offen sc1")
    e("s_waitcnt vmcnt(0)")
    e("s_barrier")
    S["signal_ready"](e, t0, t1)
    if before_main:
        before_main()
        consts()

    pitch = 11 if isO else 13
    e(f"s_load_dwordx2 {tsrd[0:2]}, s[0:1], {dict(Q=16, K=24, V=32, O=40)[role]}")
    e(f"s_mov_b32 {tsrd[2]}, {8 << 20}")
    e(f"s_mov_b32 {tsrd[3]}, 0x20000")
    wa, tra = G[0], G[1]
    e(f"v_lshrrev_b32 {wa}, 2, {lane}")
    e(f"v_lshlrev_b32 {wa}, {pitch}, {wa}")
    e(f"v_and_b32 {t0}, 3, {lane}")
    e(f"v_lshl_add_u32 {wa}, {t0}, 4, {wa}")
    if isO:
        e(f"s_lshr_b32 {a0}, {sj}, 3")
        e(f"s_lshl_b32 {a0}, {a0}, 21")
        e(f"s_and_b32 {a1}, {sj}, 7")
        e(f"s_lshl_b32 {a1}, {a1}, 8")
        e(f"s_add_u32 {a0}, {a0}, {a1}")
    else:
        e(f"s_lshl_b32 {a0}, {sj}, 8")
    e(f"s_lshl_b32 {a1}, {sw}, 6")
    e(f"s_add_u32 {a0}, {a0}, {a1}")
    e(f"v_bfe_u32 {tra}, {lane}, 2, 2")
    e(f"v_lshrrev_b32 {t0}, 5, {lane}")
    e(f"v_lshl_add_u32 {tra}, {t0}, 3, {tra}")
    e(f"v_lshlrev_b32 {tra}, 6, {tra}")
    e(f"v_bfe_u32 {t0}, {lane}, 4, 1")
    e(f"v_lshl_add_u32 {tra}, {t0}, 5, {tra}")
    e(f"v_and_b32 {t0}, 1, {lane}")
    e(f"v_lshl_add_u32 {tra}, {t0}, {3 if role == 'V' else 4}, {tra}")
    e(f"v_bfe_u32 {t0}, {lane}, 1, 1")
    e(f"v_lshl_add_u32 {tra}, {t0}, {4 if role == 'V' else 3}, {tra}")
    e(f"s_lshl_b32 {a2}, {sw}, 15")
    e(f"v_add_u32 {tra}, {a2}, {tra}")
    e("s_waitcnt lgkmcnt(0)")

    def stage(half):
        e(f"s_add_u32 {a1}, {a2}, {16384 * half}")
        for i in range(16):
            e(f"s_mov_b32 m0, {a1}")
            e(f"s_add_u32 {a1}, {a1}, 1024")
            e(f"buffer_load_dwordx4 {wa}, {tsrd}, {a0} offen lds")
            e(f"s_add_u32 {a0}, {a0}, {16 << pitch}")

    def pull(rnd):
        for k in range(16):
            for hf in range(2):
                off = 16384 * (rnd & 1) + (16 * k + 4 * hf) * 64
                e(f"ds_read_b64_tr_b16 {W.sub(4 * (16 * rnd + k) + 2 * hf, 2)}, {tra} offset:{off}")
            if k % 4 == 3:
                e("s_waitcnt lgkmcnt(0)")

    stage(0)
    stage(1)
    for rnd in range(4):
        e(f"s_waitcnt vmcnt({16 if rnd < 3 else 0})")
        pull(rnd)
        if rnd < 2:
            stage(rnd & 1)
    e("s_barrier")
    S["wait_ready"](e, G[2:4])

    if isO:
        e(f"s_load_dwordx2 {tsrd[0:2]}, s[0:1], 128")
        e(f"s_mov_b32 {tsrd[2]}, {8 << 20}")
        e(f"s_mov_b32 {tsrd[3]}, 0x20000")
        for i in range(4):
            e(f"s_mov_b32 {src[i]}, {ws[i]}")
        e(f"s_lshr_b32 {a0}, {sj}, 3")
        e(f"s_lshl_b32 {a0}, {a0}, 2")
        e(f"s_add_u32 {a0}, {a0}, {sw}")
        e(f"s_lshl_b32 {oX}, {a0}, 14")
        e(f"s_add_u32 {oX}, {oX}, {LY.OX}")
        e(f"s_lshl_b32 {oF}, {a0}, 5")
        e(f"s_add_u32 {oF}, {oF}, {LY.FO}")
        e(f"s_lshl_b32 {oL}, {sw}, 14")
        XSTEP = 0x40000
    else:
        e(f"s_load_dwordx2 {src[0:2]}, s[0:1], 0")
        e(f"s_mov_b32 {src[2]}, {4 << 20}")
        e(f"s_mov_b32 {src[3]}, 0x20000")
        e(f"s_lshl_b32 {oX}, {sw}, 14")
        e(f"s_mul_i32 {oL}, {sw}, {8 * 2064}")
        e(f"s_lshl_b32 {a0}, {sj}, 2")
        e(f"s_add_u32 {a0}, {a0}, {sw}")
        e(f"s_lshl_b32 {oY}, {a0}, 11")
        e(f"s_add_u32 {oY}, {oY}, {dict(K=LY.KX, V=LY.VX, Q=LY.QX)[role]}")
        XSTEP = 0x10000
    e("s_waitcnt lgkmcnt(0)")
    ld_flag = "sc1 " if isO else ""

    def dma_ops(buf, base):
        ops = []
        if isO:
            for i in range(4):
                for q in range(4):
                    g = []
                    if q == 0:
                        g += [f"s_add_u32 m0, {oL}, {buf * BUF + 4096 * i}", f"s_add_u32 {a2}, {base}, {4096 * i}"]
                    g.append(f"buffer_load_dwordx4 {l16}, {src}, {a2} offen offset:{1024 * q} {ld_flag}lds")
                    ops.append(g)
        else:
            for r in range(8):
                for q in range(2):
                    g = []
                    if q == 0:
                        g += [f"s_add_u32 m0, {oL}, {buf * BUF + 2064 * r}", f"s_add_u32 {a2}, {base}, {2048 * r}"]
                    g.append(f"buffer_load_dwordx4 {l16}, {src}, {a2} offen offset:{1024 * q} lds")
                    ops.append(g)
        return ops

    kstep = 1024 if isO else 32

    def rd(buf, k):
        return f"ds_read_b128 {ring.sub(4 * (k % 8), 4)}, {xr[buf]} offset:{kstep * k}"

    def segment(buf, extra, boundary):
        a = acc[buf]
        for k in range(64):
            if k < 58:
                e("s_waitcnt lgkmcnt(5)")
            elif k < 60:
                e(f"s_waitcnt lgkmcnt({63 - k})")
            f, w_ = ring.sub(4 * (k % 8), 4), W.sub(4 * k, 4)
            A, B = (f, w_) if role == "V" else (w_, f)
            if "m16" in p.dbg:
                for t in range(2):
                    d = a.sub(8 * (k & 1) + 4 * t, 4)
                    w_ = W.sub(8 * (k >> 1) + 4 * t, 4)
                    A, B = (f, w_) if role == "V" else (w_, f)
                    e(f"v_mfma_f32_16x16x32_bf16 {d}, {A}, {B}, {0 if k < 2 else d}")
            else:
                e(f"{M32} {a}, {A}, {B}, {0 if k == 0 else a}")
            if k < 58 and not ("half" in p.dbg and k & 1) and "nord" not in p.dbg:
                e(rd(buf, k + 6))
            for x in extra.get(k, []):
                x() if callable(x) else e(x)
            if k == 59:
                e("s_waitcnt lgkmcnt(0)")
                boundary()
                e("s_barrier")
            if 59 <= k <= 61:
                e(rd(buf ^ 1, 2 * (k - 59)))
                e(rd(buf ^ 1, 2 * (k - 59) + 1))

    def add(extra, k, ops):
        extra.setdefault(k, []).extend(ops)

    def spread_dma(extra, buf, base):
        for i, g in enumerate(dma_ops(buf, base)):
            add(extra, p.dstep * i // 2, g)

    def pack_ops(a):
        return [f"v_cvt_pk_bf16_f32 {pk[i]}, {a[2 * i]}, {a[2 * i + 1]}" for i in range(8)]

    def y_stores():
        f = "" if role == "Q" else " sc1"
        return [f"buffer_store_dwordx4 {pk[0:4]}, {l16}, {ws}, {oY} offen{f}",
                f"buffer_store_dwordx4 {pk[4:8]}, {l16}, {ws}, {oY} offen offset:1024{f}",
                f"s_add_u32 {oY}, {oY}, 0x40000"]

    word = f"buffer_store_dword {fval}, {fad}, {ws}, 0 offen sc1"

    def wait_words(name, load, regs, need):
        e.label(L(name))
        e(f"s_min_u32 {a0}, {regs[0]}, {regs[1]}")
        for r in regs[2:]:
            e(f"s_min_u32 {a0}, {a0}, {r}")
        e(f"s_cmp_gt_u32 {a0}, {need}")
        e(f"s_cbranch_scc1 {L(name + 'ok')}")
        e(load)
        spin_check()
        e("s_waitcnt lgkmcnt(0)")
        e(f"s_branch {L(name)}")
        e.label(L(name + "ok"))

    for i in range(16):
        e(f"s_mov_b32 {fl[i]}, 0")
    e(f"s_mov_b32 {seg}, 0")

    def first_fill():
        for g in dma_ops(0, oX):
            for x in g:
                e(x)
        e("s_waitcnt vmcnt(0)")
        e("s_barrier")
        for k in range(6):
            e(rd(0, k))

    if not isO:
        first_fill()
        nun = 4 if role == "Q" else 2
        e(f"s_add_u32 {oY}, {oY}, {0x40000000 - 0x40000}")
        if role == "Q":
            attention = make_attention(e, S, locals())
        e.label(L("loop"))
        for u in range(nun):
            buf = u & 1
            extra = {}
            if p.dbg != "same":
                add(extra, 0, [f"s_add_u32 {oX}, {oX}, {XSTEP}"])
            if p.dbg != "nodma":
                spread_dma(extra, buf ^ 1, oX)
            ops = pack_ops(acc[buf ^ 1])
            for i in range(4):
                add(extra, 4 + i, ops[2 * i:2 * i + 2])
            ys = y_stores()
            if p.dbg != "nost":
                add(extra, 9, [ys[0]])
                add(extra, 11, ys[1:] + [f"s_bitset0_b32 {oY}, 30"])
            after = sum(p.dstep * i // 2 > 11 for i in range(16))
            wslot = max(37, p.dstep * 15 // 2 + 1)
            if role != "Q":
                add(extra, wslot, [f"v_mov_b32 {fval}, {seg}", f"s_waitcnt vmcnt({after})", word])
            elif u == 0:
                add(extra, wslot, [f"s_waitcnt vmcnt({after})", word])
            add(extra, 57, [f"s_add_u32 {seg}, {seg}, 1"])
            late = 1 if (role != "Q" or u == 0) else 0
            segment(buf, extra, lambda: e(f"s_waitcnt vmcnt({late})"))
        if role == "Q":
            e(f"s_cmp_eq_u32 {seg}, 4")
            e(f"s_cbranch_scc1 {L('loop')}")
            e(f"s_sub_u32 {pre}, {seg}, 8")
            attention("a")
        e(f"s_cmp_lt_u32 {seg}, 64")
        e(f"s_cbranch_scc1 {L('loop')}")
        e.nop(12)
        for x in pack_ops(acc[1]) + y_stores():
            e(x)
        if role != "Q":
            e(f"v_mov_b32 {fval}, 64")
        e("s_waitcnt vmcnt(0)")
        e(word)
        if role == "Q":
            e("s_barrier")
            e(f"s_mov_b32 {pre}, 60")
            attention("b")
            e("s_waitcnt vmcnt(0)")
            e(word)
    else:
        emit_o_main(e, S, locals())
    e("s_waitcnt vmcnt(0) lgkmcnt(0)")
    e("s_barrier")
    if after_main:
        after_main()
    e(f"s_branch {dead}")


def make_attention(e, S, c):
    G, acc, ws, l16, fsw, lane, oob = (c[n] for n in "G acc ws l16 fsw lane oob".split())
    kma, vma, t0, t1, t2, fval = (c[n] for n in "kma vma t0 t1 t2 fval".split())
    a0, a1, a2, pre, fl, oF, oS = (c[n] for n in "a0 a1 a2 pre fl oF oS".split())
    sj, sw = S["j"], S["w"]
    Kf, KM, Qf, Vf, VM, Sm, bias = G[0:32], G[32:64], G[64:96], G[96:128], G[128:136], G[136:152], G[152:168]
    cc, sm = G[168:170], G[170:172]
    Sx = acc[0]
    O = [G.sub(16 * t, 16) for t in range(4)]
    Pk = Qf[0:10]
    e(f"v_and_b32 {t0}, 31, {lane}")
    e(f"v_lshrrev_b32 {t1}, 5, {lane}")
    e(f"v_lshlrev_b32 {kma}, 6, {t0}")
    e(f"v_lshl_add_u32 {kma}, {t1}, 4, {kma}")
    e(f"v_cmp_gt_u32 vcc, 8, {t0}")
    e(f"v_lshlrev_b32 {vma}, 4, {t2}")
    e(f"v_lshl_add_u32 {vma}, {t1}, 3, {vma}")
    e(f"v_cndmask_b32 {kma}, {oob}, {kma}, vcc")
    e(f"v_lshlrev_b32 {t1}, 3, {t1}")
    e(f"v_sub_u32 {t0}, {t0}, {t1}")
    e(f"v_mov_b32 {t1}, 0xf149f2ca")
    for r in range(16):
        key = 16 * (r >> 3) + 4 * ((r >> 2) & 1) + (r & 3)
        e(f"v_cmp_gt_i32 vcc, {key}, {t0}")
        e.nop(2)
        e(f"v_cndmask_b32 {bias[r]}, 0, {t1}, vcc")
    e(f"v_mov_b32 {cc[0]}, {SCALE_LOG2E:#x}")
    e(f"s_lshl_b32 {oF}, {sj}, 7")
    e(f"s_add_u32 {oF}, {oF}, {LY.FK}")

    def attention(name):
        load = f"s_load_dwordx16 {fl}, {ws[0:2]}, {oF} glc"
        e(f"s_add_u32 {pre}, {pre}, {sw}")
        e("s_waitcnt lgkmcnt(0)")
        c["wait_words"](name + "kv", load, [fl[i] for i in range(8)], pre)
        e(f"s_lshl_b32 {a1}, {pre}, 5")
        e(f"s_add_u32 {a1}, {a1}, {sj}")
        e(f"s_lshl_b32 {oS}, {a1}, 13")
        for dstr, base, addr in ((Kf, LY.KX, fsw), (Qf, LY.QX, l16), (Vf, LY.VX, fsw)):
            for hf in range(2):
                e(f"s_add_u32 {a2}, {oS}, {base + 4096 * hf}")
                for q in range(4):
                    e(f"buffer_load_dwordx4 {dstr.sub(16 * hf + 4 * q, 4)}, {addr}, {ws}, {a2} offen offset:{1024 * q} sc1")
        c["wait_words"](name + "m", load, [fl[8 + i] for i in range(4)], pre)
        e(f"s_lshr_b32 {a1}, {oS}, 2")
        e(f"s_add_u32 {a2}, {a1}, {LY.KM}")
        for k in range(8):
            e(f"buffer_load_dwordx4 {KM.sub(4 * k, 4)}, {kma}, {ws}, {a2} offen offset:{512 * (k >> 1) + 32 * (k & 1)} sc1")
        e(f"s_add_u32 {a2}, {a1}, {LY.VM}")
        for t in range(4):
            e(f"buffer_load_dwordx2 {VM.sub(2 * t, 2)}, {vma}, {ws}, {a2} offen offset:{512 * t} sc1")
        e("s_waitcnt vmcnt(20)")
        for k in range(8):
            e(f"{M32} {Sx}, {Kf.sub(4 * k, 4)}, {Qf.sub(4 * k, 4)}, {bias if k == 0 else Sx}")
        e("s_waitcnt vmcnt(4)")
        for k in range(8):
            e(f"{M32} {Sm}, {KM.sub(4 * k, 4)}, {Qf.sub(4 * k, 4)}, {0 if k == 0 else Sm}")
        e.nop(4)
        e(f"v_max3_f32 {t0}, {Sx[0]}, {Sx[1]}, {Sx[2]}")
        for i in range(3, 15, 2):
            e(f"v_max3_f32 {t0}, {t0}, {Sx[i]}, {Sx[i + 1]}")
        e(f"v_max_f32 {t0}, {t0}, {Sx[15]}")
        e(f"v_max3_f32 {t0}, {t0}, {Sm[0]}, {Sm[1]}")
        e(f"v_max3_f32 {t0}, {t0}, {Sm[2]}, {Sm[3]}")
        e(f"v_mov_b32 {t1}, {t0}")
        e.nop(2)
        e(f"v_permlane32_swap_b32 {t0}, {t1}")
        e.nop(1)
        e(f"v_max_f32 {t0}, {t0}, {t1}")
        e(f"v_mul_f32 {t0}, {cc[0]}, {t0}")
        vals = [Sx[i] for i in range(16)] + [Sm[i] for i in range(4)]
        pairs = [Sx.sub(2 * i, 2) for i in range(8)] + [Sm.sub(2 * i, 2) for i in range(2)]
        for r in vals:
            e(f"v_fma_f32 {r}, {r}, {cc[0]}, -{t0}")
        for r in vals:
            e(f"v_exp_f32 {r}, {r}")
        e(f"v_pk_add_f32 {sm}, {pairs[0]}, {pairs[1]}")
        for pr in pairs[2:]:
            e(f"v_pk_add_f32 {sm}, {sm}, {pr}")
        e(f"v_add_f32 {t0}, {sm[0]}, {sm[1]}")
        e(f"v_add_f32 {t1}, {sm[0]}, {sm[1]}")
        e.nop(2)
        e(f"v_permlane32_swap_b32 {t0}, {t1}")
        e.nop(1)
        e(f"v_add_f32 {t0}, {t0}, {t1}")
        e(f"v_rcp_f32 {sm[0]}, {t0}")
        e.nop(1)
        for pr in pairs:
            e(f"v_pk_mul_f32 {pr}, {pr}, {sm} op_sel_hi:[1,0]")
        for i, pr in enumerate(pairs):
            e(f"v_cvt_pk_bf16_f32 {Pk[i]}, {pr[0]}, {pr[1]}")
        e("s_waitcnt vmcnt(0)")
        e(f"s_add_u32 {a2}, {oS}, {LY.OX}")
        e(f"s_add_u32 {a1}, {a2}, 4096")
        for t in range(4):
            e(f"{M32} {O[t]}, {Vf.sub(8 * t, 4)}, {Pk[0:4]}, 0")
            e(f"{M32} {O[t]}, {Vf.sub(8 * t + 4, 4)}, {Pk[4:8]}, {O[t]}")
            e(f"{M8} {O[t]}, {VM.sub(2 * t, 2)}, {Pk[8:10]}, {O[t]}")
        e.nop(3)
        for t in range(4):
            d = Vf.sub(8 * t, 8)
            for i in range(8):
                e(f"v_cvt_pk_bf16_f32 {d[i]}, {O[t][2 * i]}, {O[t][2 * i + 1]}")
            for q in range(2):
                e(f"buffer_store_dwordx4 {d.sub(4 * q, 4)}, {l16}, {ws}, {a2 if t < 2 else a1} offen offset:{2048 * (t & 1) + 1024 * q} sc1")
        e(f"v_add_u32 {fval}, 1, {fval}")
    return attention


def emit_o_main(e, S, c):
    G, acc, ws, tsrd, l16, lane = (c[n] for n in "G acc ws tsrd l16 lane".split())
    t0, t1, osta, fval, pk = (c[n] for n in "t0 t1 osta fval pk".split())
    seg, a0, a1, a2, oX, oY, oF, oS, pre, fl = (c[n] for n in "seg a0 a1 a2 oX oY oF oS pre fl".split())
    L, add, segment, dma_ops, wait_words, word = (c[n] for n in "L add segment dma_ops wait_words word".split())
    sj, sw = S["j"], S["w"]
    s = S["alloc"]
    kg, ph, oP, oD, need, oOut = (s.alloc(c["tag"] + n) for n in "kg ph oP oD need oOut".split())
    hold, PR = G[8:24], G[24:72]
    fo, fp = fl[0:8], fl[8:12]
    load_o = f"s_load_dwordx8 {fo}, {ws[0:2]}, {oF} glc"
    load_p = f"s_load_dwordx4 {fp}, {ws[0:2]}, {oS} glc"
    e(f"s_lshr_b32 {kg}, {sj}, 3")
    e(f"s_and_b32 {a0}, {sj}, 7")
    e(f"s_lshl_b32 {a0}, {a0}, 2")
    e(f"s_add_u32 {a0}, {a0}, {sw}")
    e(f"s_lshl_b32 {oP}, {a0}, 14")
    e(f"s_add_u32 {oP}, {oP}, {LY.PART}")
    e(f"s_lshl_b32 {oOut}, {a0}, 6")
    e(f"v_and_b32 {t0}, 31, {lane}")
    e(f"v_lshrrev_b32 {t1}, 5, {lane}")
    e(f"v_lshlrev_b32 {osta}, 12, {t0}")
    e(f"v_lshl_add_u32 {osta}, {t1}, 4, {osta}")
    uid = [0]

    def send_or_hold(a, sreg):
        uid[0] += 1
        n = uid[0]
        e(f"s_sub_u32 {ph}, {kg}, {sreg}")
        e(f"s_and_b32 {ph}, {ph}, 3")
        e(f"s_cbranch_scc0 {L(f'hold{n}')}")
        e(f"s_lshl_b32 {a0}, {sreg}, 19")
        e(f"s_lshl_b32 {a1}, {ph}, 12")
        e(f"s_add_u32 {a0}, {a0}, {a1}")
        e(f"s_add_u32 {a0}, {a0}, {oP}")
        for q in range(4):
            e(f"buffer_store_dwordx4 {a.sub(4 * q, 4)}, {l16}, {ws}, {a0} offen offset:{1024 * q} sc1")
        e(f"s_branch {L(f'sent{n}')}")
        e.label(L(f"hold{n}"))
        for i in range(16):
            e(f"v_mov_b32 {hold[i]}, {a[i]}")
        e.label(L(f"sent{n}"))

    def fetch(sreg, name):
        wait_words(name, load_p, [fp[i] for i in range(4)], sreg)
        e(f"s_lshl_b32 {a0}, {sreg}, 19")
        e(f"s_add_u32 {a0}, {a0}, {oP}")
        for u in range(3):
            e(f"s_add_u32 {a0}, {a0}, 4096")
            for q in range(4):
                e(f"buffer_load_dwordx4 {PR.sub(16 * u + 4 * q, 4)}, {l16}, {ws}, {a0} offen offset:{1024 * q} sc1")

    def finish(sreg):
        for u in range(3):
            for i in range(8):
                e(f"v_pk_add_f32 {hold.sub(2 * i, 2)}, {hold.sub(2 * i, 2)}, {PR.sub(16 * u + 2 * i, 2)}")
        for i in range(8):
            e(f"v_cvt_pk_bf16_f32 {pk[i]}, {hold[2 * i]}, {hold[2 * i + 1]}")
        e(f"s_lshl_b32 {a0}, {sreg}, 17")
        e(f"s_add_u32 {a0}, {a0}, {oOut}")
        e(f"buffer_store_dwordx4 {pk[0:4]}, {osta}, {tsrd}, {a0} offen")
        e(f"buffer_store_dwordx4 {pk[4:8]}, {osta}, {tsrd}, {a0} offen offset:32")

    def when_mine(back, body):
        uid[0] += 1
        n = uid[0]
        e(f"s_sub_u32 {need}, {seg}, {back}")
        e(f"s_cbranch_scc1 {L(f'no{n}')}")
        e(f"s_xor_b32 {a0}, {need}, {kg}")
        e(f"s_and_b32 {a0}, {a0}, 3")
        e(f"s_cbranch_scc1 {L(f'no{n}')}")
        body(need, f"w{n}")
        e.label(L(f"no{n}"))

    e(f"s_mov_b32 {need}, 0")
    wait_words("first", load_o, [fo[0], fo[4]], need)
    c["first_fill"]()
    e.label(L("loop"))
    for u in range(4):
        buf = u & 1
        un = (u + 1) & 3
        extra = {}

        def head(un=un):
            e(f"s_add_u32 {oX}, {oX}, 0x40000")
            e(f"s_add_u32 {a1}, {seg}, 1")
            e(f"s_lshr_b32 {a1}, {a1}, 2")
            e(f"s_min_u32 {a0}, {fo[un]}, {fo[4 + un]}")
            e(f"s_cmp_gt_u32 {a0}, {a1}")
            e(f"s_cselect_b32 {pre}, 1, 0")
            e(f"s_cselect_b32 {oD}, {oX}, 0x40000000")
        add(extra, 0, [head])
        for i, g in enumerate(dma_ops(buf ^ 1, oD)):
            add(extra, 1 + 2 * i, g)

        def epi(buf=buf):
            uid[0] += 1
            n = uid[0]
            e(f"s_sub_u32 {need}, {seg}, 1")
            e(f"s_cbranch_scc1 {L(f'ne{n}')}")
            send_or_hold(acc[buf ^ 1], need)
            e.label(L(f"ne{n}"))
        add(extra, 2, [lambda: when_mine(3, lambda r, n: finish(r))])
        add(extra, 6, [epi])
        add(extra, 36, [f"v_mov_b32 {fval}, {seg}", "s_waitcnt vmcnt(13)", word])
        add(extra, 38, [lambda: when_mine(2, fetch)])
        add(extra, 16, [load_p])
        add(extra, 40, [load_o])

        def boundary(u=u, un=un, buf=buf):
            e(f"s_add_u32 {seg}, {seg}, 1")
            e(f"s_cmp_eq_u32 {seg}, 64")
            e(f"s_cselect_b32 {pre}, 1, {pre}")
            e(f"s_cmp_eq_u32 {pre}, 1")
            e(f"s_cbranch_scc1 {L(f'pre{u}')}")
            e(f"s_lshr_b32 {need}, {seg}, 2")
            wait_words(f"o{u}", load_o, [fo[un], fo[4 + un]], need)
            for g in dma_ops(buf ^ 1, oX):
                for x in g:
                    e(x)
            e.label(L(f"pre{u}"))
            e("s_waitcnt vmcnt(0)")
        segment(buf, extra, boundary)
    e(f"s_cmp_lt_u32 {seg}, 64")
    e(f"s_cbranch_scc1 {L('loop')}")
    when_mine(3, lambda r, n: finish(r))
    e.nop(12)
    e(f"s_mov_b32 {need}, 63")
    send_or_hold(acc[1], need)
    e(f"v_mov_b32 {fval}, 64")
    e("s_waitcnt vmcnt(0) lgkmcnt(0)")
    e(word)
    for back in (2, 1):
        when_mine(back, lambda r, n: (fetch(r, n), e("s_waitcnt vmcnt(0)"), finish(r)))
```

```python
import os, sys
from emit import Emit, Regs, R
import layout as LY
import chain
import proj
import partb

NAME = "concat_heads__memory_aug_recurrent_mem_tr__ssm_conv_s4__prompt"
LDS = 135168
READY = 224
READY_SAFE = 240


def build(p, par=None, roles="CKVQOB"):
    nready = 128 * ("C" in roles) + 32 * sum(r in roles for r in "KVQO")
    e = Emit()
    s = Regs("s", 4, 102)
    S = {"alloc": s}
    S["ws"] = ws = s.alloc("ws", 4, 4)
    S["tsrd"] = s.alloc("tsrd", 4, 4)
    S["dbg"] = dbg = s.alloc("dbg", 4, 4)
    S["x"], S["j"], S["w"], S["par"], S["cu"], safe, rdy = (s.alloc(n) for n in "x j w par cu safe rdy".split())
    tmp = s.alloc("tmp", 2, 2)
    S["exit"] = "L_done"
    S["calibrate"] = par is None
    S["parword"] = READY + 4
    tm = s.alloc("tm", 10, 2) if p.times else None
    TK = LDS - 64

    e("s_cmp_ge_u32 s2, 256")
    e("s_cbranch_scc1 L_exit")
    if p.times:
        e(f"s_memrealtime {tm[0:2]}")
    e(f"s_load_dwordx2 {ws[0:2]}, s[0:1], 144")
    e(f"s_load_dwordx2 {dbg[0:2]}, s[0:1], 136")
    e(f"s_getreg_b32 {S['x']}, hwreg(HW_REG_XCC_ID, 0, 4)")
    e("v_lshrrev_b32 v1, 6, v0")
    e(f"s_mov_b32 {ws[2]}, {LY.WS_RECORDS:#x}")
    e(f"s_mov_b32 {ws[3]}, 0x20000")
    e(f"v_readfirstlane_b32 {S['w']}, v1")
    e(f"s_mov_b32 {dbg[2]}, 256")
    e(f"s_mov_b32 {dbg[3]}, 0x20000")
    e(f"s_mov_b32 {S['par']}, {0 if par is None else (0xaa if par == 0 else 0x55)}")
    e(f"s_mov_b32 {safe}, 0")
    e(f"s_mov_b32 {rdy}, {READY}")
    e(f"s_and_b32 {tmp[0]}, s2, 7")
    e(f"s_lshl_b32 {tmp[0]}, {tmp[0]}, 5")
    e(f"s_lshr_b32 {S['cu']}, s2, 3")
    e(f"s_add_u32 {S['cu']}, {S['cu']}, {tmp[0]}")
    e("s_waitcnt lgkmcnt(0)")
    e(f"s_add_u32 {ws[0]}, {ws[0]}, 0x1fffff")
    e(f"s_addc_u32 {ws[1]}, {ws[1]}, 0")
    e(f"s_and_b32 {ws[0]}, {ws[0]}, 0xffe00000")
    e(f"v_mov_b32 v2, {TK}")
    e(f"s_cmp_lg_u32 {S['w']}, 0")
    e("s_cbranch_scc1 L_ticket")
    e(f"s_and_b32 {tmp[0]}, {S['x']}, 3")
    e(f"s_lshl_b32 {tmp[0]}, {tmp[0]}, 6")
    e(f"s_and_b32 {tmp[1]}, {S['x']}, 12")
    e(f"s_add_u32 {tmp[0]}, {tmp[0]}, {tmp[1]}")
    e(f"v_mov_b32 v3, {tmp[0]}")
    e("v_mov_b32 v4, 1")
    e("s_mov_b64 exec, 1")
    e(f"buffer_atomic_add v4, v3, {dbg}, 0 offen sc0 sc1")
    e("s_waitcnt vmcnt(0)")
    e("ds_write_b32 v2, v4")
    e("s_waitcnt lgkmcnt(0)")
    e("s_mov_b64 exec, -1")
    e.label("L_ticket")
    if "B" in roles:
        partb.emit_partb(e, S, "pb", 0)
    e("s_barrier")
    e("ds_read_b32 v4, v2")
    e("s_waitcnt lgkmcnt(0)")
    e(f"v_readfirstlane_b32 {S['j']}, v4")
    e("s_barrier")

    def arrive(e, va, vb, amount):
        l = e.new_label("sig")
        e(f"s_cmp_lg_u32 {S['w']}, 0")
        e(f"s_cbranch_scc1 {l}")
        e(f"v_mov_b32 {va}, {rdy}")
        e(f"v_mov_b32 {vb}, {amount}")
        e("s_mov_b64 exec, 1")
        e(f"buffer_atomic_add {vb}, {va}, {dbg}, 0 offen sc1")
        e("s_mov_b64 exec, -1")
        e.label(l)

    def wait_ready(e, vp, need_par=False):
        l = e.new_label("rdy")
        e(f"s_mov_b32 s3, 0")
        e.label(l)
        e(f"buffer_load_dwordx2 {vp}, off, {dbg}, {rdy} sc1")
        e(f"s_add_u32 s3, s3, 1")
        e(f"s_cmp_gt_u32 s3, {chain.SPIN_MAX}")
        e("s_cbranch_scc1 L_exit")
        e("s_waitcnt vmcnt(0)")
        e(f"v_readfirstlane_b32 {tmp[0]}, {vp[0]}")
        e(f"v_readfirstlane_b32 {tmp[1]}, {vp[1]}")
        e(f"s_and_b32 vcc_lo, {tmp[0]}, 0xffff")
        e(f"s_cmp_lt_u32 vcc_lo, {nready}")
        e(f"s_cbranch_scc1 {l}")
        e(f"s_lshr_b32 vcc_lo, {tmp[0]}, 16")
        e("s_cbranch_scc1 L_general")
        if need_par:
            e(f"s_lshr_b32 vcc_lo, {tmp[1]}, 16")
            e("s_cmp_lt_u32 vcc_lo, 8")
            e(f"s_cbranch_scc1 {l}")
            e(f"s_mov_b32 {S['par']}, {tmp[1]}")
        if p.times:
            e(f"s_memrealtime {tm[2:4]}")
            e(f"s_memtime {tm[6:8]}")
            e("s_waitcnt lgkmcnt(0)")

    S["signal_ready"] = lambda e, va, vb: arrive(e, va, vb, 1)
    S["wait_ready"] = wait_ready

    e(f"s_cmp_ge_u32 {S['j']}, {0 if p.force_general == 2 else 32 - p.force_general}")
    e("s_cbranch_scc1 L_odd")
    e(f"s_cmp_lt_u32 {S['x']}, 8")
    e("s_cbranch_scc1 L_dispatch")
    e.label("L_odd")
    arrive(e, "v3", "v4", 0x10001)
    wait_ready(e, R('v', 6, 2))
    e.label("L_general")
    e("s_waitcnt vmcnt(0) lgkmcnt(0)")
    e("s_barrier")
    e(f"s_mov_b32 {safe}, 1")
    e(f"s_mov_b32 {rdy}, {READY_SAFE}")
    e(f"s_mov_b32 {S['par']}, 0")
    e(f"s_lshr_b32 {S['x']}, s2, 5")
    e(f"s_and_b32 {S['j']}, s2, 31")
    e(f"s_add_u32 {ws[0]}, {ws[0]}, 0x200000")
    e(f"s_addc_u32 {ws[1]}, {ws[1]}, 0")
    e.label("L_dispatch")
    mark = s.next
    for i, r in enumerate(p.place):
        e(f"s_cmp_eq_u32 {S['x']}, {4 + i}")
        e(f"s_cbranch_scc1 {'L_role_' + r if r in roles else 'L_exit'}")
    if "C" in roles:
        e(f"s_cmp_eq_u32 {safe}, 1")
        e("s_cbranch_scc1 L_role_G")
        chain.emit_chain(e, S, p, "", "cf")
    e.label("L_done")
    if p.times:
        e(f"s_memrealtime {tm[4:6]}")
        e(f"s_memtime {tm[8:10]}")
        e(f"s_lshl_b32 {tmp[0]}, {S['x']}, 5")
        e(f"s_add_u32 {tmp[0]}, {tmp[0]}, {S['j']}")
        e(f"s_lshl_b32 {tmp[0]}, {tmp[0]}, 2")
        e(f"s_add_u32 {tmp[0]}, {tmp[0]}, {S['w']}")
        e(f"s_lshl_b32 {tmp[0]}, {tmp[0]}, 4")
        e(f"s_add_u32 {tmp[0]}, {tmp[0]}, {LY.TIMES}")
        e("s_mov_b64 exec, -1")
        e("s_waitcnt lgkmcnt(0) vmcnt(0)")
        e("v_mov_b32 v1, 0")
        e(f"s_sub_u32 {tm[6]}, {tm[8]}, {tm[6]}")
        for i in range(4):
            e(f"v_mov_b32 v{2 + i}, {tm[2 * i]}")
        e(f"buffer_store_dwordx4 v[2:5], v1, {ws}, {tmp[0]} offen")
    e.label("L_exit")
    e("s_endpgm")
    for r in "KVQO":
        if r in roles:
            s.next = mark
            e.label("L_role_" + r)
            proj.emit_proj(e, S, p, r, "r" + r)
    if "C" in roles:
        s.next = mark
        e.label("L_role_G")
        chain.emit_chain(e, S, p, "sc1", "cg")

    head = open(os.path.join(os.path.dirname(os.path.abspath(__file__)), "..", NAME + ".s.ref")).read().split("; Override launch")[0]
    return f"""{head}; @launch grid=(256,1,1) block=(256,1,1) lds={LDS}
.amdgcn_target "amdgcn-amd-amdhsa--gfx950"
.text
.globl {NAME}_kernel
.p2align 8
.type {NAME}_kernel,@function
{NAME}_kernel:
{e.text()}
.section .rodata,"a"
.p2align 6
.amdhsa_kernel {NAME}_kernel
  .amdhsa_next_free_vgpr 512
  .amdhsa_next_free_sgpr 102
  .amdhsa_accum_offset 256
  .amdhsa_group_segment_fixed_size 0
  .amdhsa_kernarg_size 152
  .amdhsa_user_sgpr_count 2
  .amdhsa_user_sgpr_kernarg_segment_ptr 1
  .amdhsa_system_sgpr_workgroup_id_x 1
  .amdhsa_float_denorm_mode_32 3
.end_amdhsa_kernel
"""


if __name__ == "__main__":
    sys.stdout.write(build(chain.P()))
```

```python
from emit import Regs, R, VM
import partb
import layout as LY

L_KV = 32768 + 16384
L_RT = 4096
L_VP = 14336
L_CP = 18432
L_FL = 19456
L_OB = 20480
L_ST = 57344
SM = "v_smfmac_f32_16x16x64_bf16"
MF = "v_mfma_f32_16x16x32_bf16"
MH = "v_mfma_f32_16x16x16_bf16"
SCALE_LOG2E = 0x3E0293EE
RANGE_T = 0x42200000
SPIN_MAX = 400000
DPP8 = "row_ror:8 row_mask:0xf bank_mask:0xf"


class P:
    dA = 0
    dB = 0
    dD = 0
    dF = 0
    nA = 4
    bpos = 4
    cann = 0
    dN = 6
    nD = 0
    csep = 4
    twice = True
    npc = 3
    fpos = 1
    xann = 's'
    dM = 70
    pre = (2,)
    thr = 8
    far = True
    flags = True
    stamps = False
    times = False
    early_vote = True
    prior = 2
    wswap = 2
    warm_x = True
    wflag = dict(C='', K='', V='', Q='', O='')
    force_general = 0
    place = "KQVO"
    dbg = ""
    dstep = 4
    nsteps = 64


def emit_chain(e, S, p, st, tag):
    v = Regs("v", 0, 256)
    names = ("tid lane l16 l8 l4 idx dma rtw rtk rtr vpw ast0 ast2 aldm bst cst dst kxr vxr kmst obr "
             "own16 ownA ownA2 cin fbs fbl fis fil fcs stv oob t0 t1 t2 t3 mx zr jnk pa pb pd fms fmv").split()
    (tid, lane, l16, l8, l4, idx, dma, rtw, rtk, rtr, vpw, ast0, ast2, aldm, bst, cst, dst, kxr, vxr, kmst,
     obr, own16, ownA, ownA2, cin, fbs, fbl, fis, fil, fcs, stv, oob, t0, t1, t2, t3, mx, zr, jnk, pa, pb,
     pd, fms, fmv) = (v.alloc(n) for n in names)
    cld = v.alloc("cld", 3)
    aldx = v.alloc("aldx", 3)
    sent = v.alloc("sent", 4, 2)
    qf = v.alloc("qf", 2, 2)
    assert v.next <= partb.VLO
    accP = v.alloc("accP", 16, 2)
    accV = v.alloc("accV", 8, 2)
    accO = v.alloc("accO", 4, 2)
    fo = v.alloc("fo", 8, 2)
    F = v.alloc("F", 16, 2)
    T = v.alloc("T", 64, 2)
    U = v.alloc("U", 64, 2)
    KV, Rr, Sc, PM, A2 = U[0:16], U[16:20], U[20:32], U[32:34], U[34:38]
    Pb, E, O, Ost, Sx = U[38:42], U[42:46], U[46:54], U[54:58], U[58:64]
    X, XM, VP = T[0:12], T[12:16], T[16:28]
    Em, Ls, Lt, Lu = T[28], T[29], T[30], T[31]
    Cx, Own, Cs, Dp = T[0:12], T[12:16], T[16:20], T[20:22]
    WP = R("a", 0, 192)
    WOa = R("a", 192, 64)
    WO = lambda b: (U if b & 2 else WOa).sub(8 * (2 * (b >> 2) + (b & 1)), 8)
    T0 = R("v", 216, 28)

    ws, tsrd = S["ws"], S["tsrd"]
    sx, sj, sw = S["x"], S["j"], S["w"]
    s = S["alloc"]
    mt = s.alloc(tag + "mt", 2, 2)
    cf = s.alloc(tag + "cf", 4, 4)
    msk = s.alloc(tag + "msk", 8, 2)
    snames = "step oD oB oA oC oKV oKM a0 a1 a2 spin rD rA rC thr bD bA oFB oFD oth oFC".split()
    (step, oD, oB, oA, oC, oKV, oKM, a0, a1, a2, spin, rD, rA, rC, thr, bD, bA, oFB, oFD, oth,
     oFC) = (s.alloc(tag + n) for n in snames)
    oFS = s.alloc(tag + "oFS", 1)
    oFW = s.alloc(tag + "oFW", 3)
    oFK = s.alloc(tag + "oFK", 2)
    kv = s.alloc(tag + "kv", 2)
    assert s.next <= partb.SLO, s.next
    NST = 12
    if p.stamps:
        assert s.next <= 82
        tsp = lambda i: S["wptr"].sub(2 * i, 2) if i < 4 else R("s", 74 + 2 * i, 2)
        fails = R("s", 98, 4)
    dead = S["exit"]

    def stamp(i):
        if p.stamps is True:
            e(f"s_memtime {tsp(i)}")

    def count_fail(i):
        if p.stamps:
            e(f"s_add_u32 {fails[i]}, {fails[i]}, 1")

    def select(dstreg, val, cond):
        e(cond)
        e.nop(2)
        e(f"v_cndmask_b32 {dstreg}, {oob}, {val}, vcc")

    def cross_off(dstreg, stepreg, tmp):
        e(f"s_lshr_b32 {tmp}, {stepreg}, 3")
        e(f"s_lshr_b32 {tmp}, {S['par']}, {tmp}")
        e(f"s_and_b32 {tmp}, {tmp}, 1")
        e(f"s_lshl_b32 {tmp}, {tmp}, 13")
        e(f"s_lshl_b32 {dstreg}, {stepreg}, 18")
        e(f"s_add_u32 {dstreg}, {dstreg}, {tmp}")
        e(f"s_add_u32 {dstreg}, {dstreg}, {LY.RING_C}")

    n_, g_ = t2, t3
    vm = VM(e, partb.LOAD_TAGS)

    def consts():
        e(f"v_and_b32 {lane}, 63, {tid}")
        e(f"v_lshlrev_b32 {l16}, 4, {lane}")
        e(f"v_lshlrev_b32 {l8}, 3, {lane}")
        e(f"v_lshlrev_b32 {l4}, 2, {lane}")
        for i in range(4):
            e(f"v_mov_b32 {sent[i]}, -1")
        e(f"v_bfrev_b32 {oob}, 1")
        e(f"v_mov_b32 {zr}, 0")
        e(f"v_mov_b32 {stv}, 0")
        e(f"v_bfe_u32 {t0}, {lane}, 1, 1")
        e(f"v_mul_u32_u24 {t0}, 0xaaaa, {t0}")
        e(f"v_add_u32 {idx}, 0x4444, {t0}")
        e(f"s_lshl_b32 {a0}, {sw}, 12")
        e(f"v_add_u32 {dma}, {a0}, {l16}")
        e(f"v_and_b32 {n_}, 15, {lane}")
        e(f"v_lshrrev_b32 {g_}, 4, {lane}")
        lo8 = f"v_cmp_gt_u32 vcc, 8, {n_}"
        hi8 = f"v_cmp_le_u32 vcc, 8, {n_}"
        e(f"s_mul_i32 {a0}, {sw}, 2304")
        e(f"s_add_u32 {a0}, {a0}, {L_RT}")
        e(f"v_mul_u32_u24 {t0}, 288, {g_}")
        e(f"v_lshl_add_u32 {t0}, {n_}, 2, {t0}")
        e(f"v_add_u32 {rtw}, {a0}, {t0}")
        e(f"v_add_u32 {rtk}, 1152, {rtw}")
        e(f"v_mul_u32_u24 {t0}, 144, {n_}")
        e(f"v_lshl_add_u32 {rtr}, {g_}, 5, {t0}")
        e(f"s_lshl_b32 {a0}, {sw}, 10")
        e(f"v_add_u32 {vpw}, {a0}, {l16}")
        e(f"v_mov_b32 {t0}, {SCALE_LOG2E:#x}")
        e(lo8)
        e.nop(2)
        e(f"v_cndmask_b32 {qf[0]}, 1.0, {t0}, vcc")
        e(f"s_mul_i32 {a0}, {sj}, 1280")
        e(f"v_add_u32 {ownA}, {a0}, {l16}")
        select(ast0, ownA, lo8)
        select(ownA2, ownA, f"v_cmp_gt_u32 vcc, 16, {lane}")
        e(f"v_lshlrev_b32 {t0}, 5, {n_}")
        e(f"v_lshl_add_u32 {t0}, {g_}, 4, {t0}")
        e(f"s_add_u32 {a1}, {a0}, {1024 - 256}")
        e(f"v_add_u32 {t0}, {a1}, {t0}")
        select(t0, t0, hi8)
        select(ast2, t0, f"v_cmp_gt_u32 vcc, 2, {g_}")
        for k in range(3):
            e(f"s_xor_b32 {a0}, {sj}, {k + 1}")
            e(f"s_mul_i32 {a0}, {a0}, 1280")
            e(f"v_add_u32 {aldx[k]}, {a0}, {l16}")
        e(f"s_and_b32 {a0}, {sj}, 28")
        e(f"s_mul_i32 {a0}, {a0}, 1280")
        e(f"s_add_u32 {a0}, {a0}, 1024")
        e(f"v_add_u32 {aldm}, {a0}, {l4}")
        e(f"s_lshl_b32 {a0}, {sj}, 9")
        e(f"v_lshlrev_b32 {t0}, 4, {n_}")
        e(f"v_lshl_add_u32 {t0}, {g_}, 7, {t0}")
        e(f"v_add_u32 {t0}, {a0}, {t0}")
        select(bst, t0, lo8)
        e(f"v_lshrrev_b32 {t0}, 2, {n_}")
        e(f"v_and_b32 {mx}, 1, {n_}")
        e(f"v_lshl_add_u32 {t0}, {t0}, 1, {mx}")
        e(f"v_bfe_u32 {mx}, {n_}, 1, 1")
        e(f"v_lshl_add_u32 {t0}, {mx}, 3, {t0}")
        e(f"v_lshl_add_u32 {t0}, {g_}, 4, {t0}")
        e(f"v_lshlrev_b32 {obr}, 4, {t0}")
        e(f"v_add_u32 {t0}, {a0}, {l16}")
        select(own16, t0, f"v_cmp_gt_u32 vcc, 32, {lane}")
        e(f"v_lshrrev_b32 {t0}, 5, {lane}")
        e(f"v_lshlrev_b32 {t0}, 8, {t0}")
        e(f"v_bfe_u32 {mx}, {lane}, 1, 3")
        e(f"v_lshl_add_u32 {t0}, {mx}, 5, {t0}")
        e(f"v_bfe_u32 {mx}, {lane}, 4, 1")
        e(f"v_lshl_add_u32 {t0}, {mx}, 4, {t0}")
        e(f"v_and_b32 {mx}, 1, {lane}")
        e(f"v_lshl_add_u32 {t0}, {mx}, 3, {t0}")
        e(f"v_add_u32 {dst}, {a0}, {t0}")
        e(f"s_lshr_b32 {a0}, {sj}, 1")
        e(f"s_lshl_b32 {a0}, {a0}, 14")
        e(f"s_and_b32 {a1}, {sj}, 1")
        e(f"s_lshl_b32 {a1}, {a1}, 12")
        e(f"s_add_u32 {a0}, {a0}, {a1}")
        e(f"v_mov_b32 {fcs}, {oob}")
        for k in range(3):
            e(f"s_add_u32 {a1}, {sx}, {k + 1}")
            e(f"s_and_b32 {a1}, {a1}, 3")
            e(f"s_lshl_b32 {a1}, {a1}, 10")
            e(f"s_add_u32 {a1}, {a1}, {a0}")
            e(f"v_add_u32 {cld[k]}, {a1}, {l16}")
            e(f"s_add_u32 {a1}, {a1}, {k * p.csep}")
            e(f"v_writelane_b32 {fcs}, {a1}, {k}")
            e(f"s_mov_b32 {oFW[k]}, {a1}")
        e(f"s_lshl_b32 {a1}, {sx}, 10")
        e(f"s_add_u32 {a0}, {a0}, {a1}")
        e(f"v_add_u32 {cin}, {a0}, {l16}")
        e(f"s_mov_b32 {oFS[0]}, {a0}")
        e(f"s_and_b32 {a1}, {sw}, 1")
        e(f"s_lshl_b32 {a1}, {a1}, 9")
        e(f"s_add_u32 {a0}, {a0}, {a1}")
        e(f"v_add_u32 {cst}, {a0}, {l4}")
        e(f"v_lshrrev_b32 {t0}, 2, {n_}")
        e(f"v_and_b32 {mx}, 3, {n_}")
        e(f"v_lshl_add_u32 {t0}, {t0}, 3, {mx}")
        e(f"v_lshlrev_b32 {t0}, 4, {t0}")
        e(f"v_lshl_add_u32 {kxr}, {g_}, 9, {t0}")
        e(f"v_lshlrev_b32 {t0}, 4, {n_}")
        e(f"v_lshl_add_u32 {vxr}, {g_}, 9, {t0}")
        e(f"v_lshl_add_u32 {t0}, {g_}, 7, {t0}")
        e(f"v_subrev_u32 {t0}, 128, {t0}")
        select(kmst, t0, hi8)
        e(f"s_lshl_b32 {a0}, {sx}, 3")
        e(f"s_lshr_b32 {a1}, {sj}, 2")
        e(f"s_add_u32 {a0}, {a0}, {a1}")
        e(f"s_lshl_b32 {a0}, {a0}, 7")
        e(f"s_and_b32 {a1}, {sj}, 3")
        e(f"s_lshl_b32 {a1}, {a1}, 2")
        e(f"s_add_u32 {a0}, {a0}, {a1}")
        e(f"s_add_u32 {oFK[0]}, {a0}, {LY.FK}")
        e(f"s_add_u32 {oFK[1]}, {a0}, {LY.FK + 16}")
        e(f"s_add_u32 {a0}, {a0}, {LY.FK + 32}")
        e(f"v_mov_b32 {t0}, {a0}")
        select(fms, t0, f"v_cmp_eq_u32 vcc, 0, {lane}")
        e(f"s_lshr_b32 {a0}, {sj}, 3")
        e(f"s_lshl_b32 {a1}, {sj}, 2")
        e(f"v_lshl_add_u32 {t0}, {lane}, 8, {a1}")
        select(fbs, t0, f"v_cmp_gt_u32 vcc, 4, {lane}")
        select(fbs, fbs, f"v_cmp_ne_u32 vcc, {a0}, {lane}")
        e(f"v_lshrrev_b32 {mx}, 3, {lane}")
        e(f"s_and_b32 {a1}, {a1}, 28")
        e(f"s_sub_u32 {a1}, {a1}, {4096 - 1024}")
        e(f"v_lshl_add_u32 {t0}, {lane}, 7, {a1}")
        e(f"s_add_u32 {a1}, {a0}, 4")
        e(f"v_cmp_eq_u32 vcc, {a1}, {mx}")
        e.nop(2)
        e(f"v_cndmask_b32 {fbs}, {fbs}, {t0}, vcc")
        e(f"s_add_u32 {a1}, {sj}, 32")
        select(fbs, fbs, f"v_cmp_ne_u32 vcc, {a1}, {lane}")
        e(f"s_lshl_b32 {a1}, {a0}, 8")
        e(f"v_add_u32 {fbl}, {a1}, {l4}")
        e(f"s_lshl_b32 {a1}, {sj}, 7")
        e(f"s_add_u32 {a1}, {a1}, 1024")
        e(f"v_and_b32 {t0}, 28, {l4}")
        e(f"v_add_u32 {t0}, {a1}, {t0}")
        e(f"v_cmp_eq_u32 vcc, {a0}, {mx}")
        e.nop(2)
        e(f"v_cndmask_b32 {fbl}, {fbl}, {t0}, vcc")
        e(f"s_lshl_b32 {oth}, 1, {sj}")
        e(f"s_not_b32 {oth}, {oth}")
        e(f"s_lshr_b32 {a0}, {sj}, 2")
        e(f"s_lshl_b32 {a0}, {a0}, 8")
        e(f"s_add_u32 {a0}, {a0}, 6144")
        e(f"v_add_u32 {fil}, {a0}, {l4}")
        e(f"s_and_b32 {a1}, {sj}, 3")
        select(fis, fil, f"v_cmp_eq_u32 vcc, {a1}, {lane}")
        e(f"s_mov_b32 {thr}, {RANGE_T:#x}")
        e(f"s_lshl_b32 {bD}, {sx}, 16")
        e(f"s_lshl_b32 {bA}, {sx}, 18")
        e(f"s_add_u32 {bA}, {bA}, {LY.RING_A}")
        e(f"s_add_u32 {bD}, {bD}, {LY.RING_D}")
        e(f"s_lshl_b32 {oFB}, {sx}, 14")
        e(f"s_add_u32 {oFB}, {oFB}, {LY.FLAGS}")
        e(f"s_add_u32 {oFD}, {oFB}, 8192")


    def init_loads():
        e(f"s_lshl_b32 {a0}, {sw}, 14")
        e(f"s_add_u32 {oD}, {bD}, {a0}")
        e(f"s_add_u32 {oB}, {oD}, {LY.RING_B - LY.RING_D}")
        e(f"s_lshl_b32 {a0}, {sw}, 16")
        e(f"s_add_u32 {oA}, {bA}, {a0}")
        e(f"s_lshl_b32 {oC}, {sw}, 18")
        e(f"s_add_u32 {oC}, {oC}, {LY.RING_C}")
        e(f"s_add_u32 {rC}, {oC}, 8192")
        e(f"s_mov_b32 {oFC}, {LY.RING_C + (63 << 18)}")
        e(f"s_mov_b32 {rD}, {LY.RING_C + (63 << 18) + 8192}")
        vm.op("il", f"buffer_load_dwordx4 {T0[0:4]}, {own16}, {ws}, {oD} offen sc1")
        vm.op("il", f"buffer_load_dwordx4 {T0[4:8]}, {own16}, {ws}, {oB} offen sc1")
        vm.op("il", f"buffer_load_dwordx4 {T0[8:12]}, {ownA}, {ws}, {oA} offen sc1")
        vm.op("il", f"buffer_load_dwordx4 {T0[12:16]}, {ownA2}, {ws}, {oA} offen offset:1024 sc1")
        vm.op("il", f"buffer_load_dword {T0[20]}, {fbs}, {ws}, {oFB} offen sc1")
        vm.op("il", f"buffer_load_dword {T0[21]}, {fis}, {ws}, {oFB} offen sc1")
        vm.op("il", f"buffer_load_dword {T0[22]}, {fbs}, {ws}, {oFD} offen sc1")
        e(f"s_load_dwordx2 {cf[0:2]}, s[0:1], 8")
        e(f"v_lshrrev_b32 {mx}, 2, {n_}")
        e(f"v_lshlrev_b32 {mx}, 1, {mx}")
        e(f"v_and_b32 {t0}, 1, {n_}")
        e(f"v_add_u32 {mx}, {mx}, {t0}")
        e(f"v_lshlrev_b32 {mx}, 11, {mx}")
        e(f"v_lshl_add_u32 {mx}, {g_}, 5, {mx}")
        e(f"v_bfe_u32 {t0}, {n_}, 1, 1")
        e(f"v_lshl_add_u32 {mx}, {t0}, 4, {mx}")
        e(f"s_lshl_b32 {a0}, {sj}, 6")
        e(f"s_mov_b32 {cf[2]}, 16384")
        e(f"s_mov_b32 {cf[3]}, 0x20000")
        e("s_waitcnt lgkmcnt(0)")
        vm.op("il", f"buffer_load_dwordx4 {T0[16:20]}, {mx}, {cf}, {a0} offen")

    def init_stores():
        vm.wait("il")
        e(f"s_cmp_eq_u32 {sw}, 0")
        e(f"s_cselect_b64 vcc, -1, 0")
        for i in range(4):
            e(f"v_min_u32 {T0[16 + i]}, -2, {T0[16 + i]}")
            e(f"v_cndmask_b32 {T0[16 + i]}, -1, {T0[16 + i]}, vcc")
        vm.op("is", f"buffer_store_dwordx4 {T0[16:20]}, {own16}, {ws}, {oD} offen {st}")
        vm.op("is", f"buffer_store_dwordx4 {sent}, {own16}, {ws}, {oB} offen {st}")
        vm.op("is", f"buffer_store_dwordx4 {sent}, {ownA}, {ws}, {oA} offen {st}")
        vm.op("is", f"buffer_store_dwordx4 {sent}, {ownA2}, {ws}, {oA} offen offset:1024 {st}")
        vm.op("is", f"buffer_store_dwordx4 {sent}, {cin}, {ws}, {oC} offen sc1")
        vm.op("is", f"buffer_store_dwordx4 {sent}, {cin}, {ws}, {rC} offen sc1")
        vm.op("is", f"buffer_store_dword {zr}, {fcs}, {ws}, {rD} offen sc1")
        vm.op("is", f"buffer_store_dword {zr}, {fbs}, {ws}, {oFB} offen {st}")
        vm.op("is", f"buffer_store_dword {zr}, {fis}, {ws}, {oFB} offen {st}")
        vm.op("is", f"buffer_store_dword {zr}, {fbs}, {ws}, {oFD} offen {st}")
        vm.op("is", f"buffer_store_dword {zr}, {fcs}, {ws}, {oFC} offen sc1")
        vm.op("is", f"buffer_store_dword {zr}, {fms}, {ws}, 0 offen sc1")

    wa13, wa11, tr1, tr3 = pa, pb, pd, jnk
    wptr, oW13, oW11, oL = S["wptr"], msk[0:2], msk[2:4], msk[4:6]

    def setup():
        e(f"s_mov_b32 {tsrd[2]}, {8 << 20}")
        e(f"s_mov_b32 {tsrd[3]}, 0x20000")
        e(f"v_and_b32 {lane}, 63, {tid}")
        e(f"v_lshrrev_b32 {t0}, 2, {lane}")
        e(f"v_and_b32 {t1}, 3, {lane}")
        e(f"v_lshlrev_b32 {t1}, 4, {t1}")
        e(f"v_lshl_add_u32 {wa13}, {t0}, 13, {t1}")
        e(f"v_lshl_add_u32 {wa11}, {t0}, 11, {t1}")
        e(f"s_lshl_b32 {a0}, {sx}, 5")
        e(f"s_add_u32 {a0}, {a0}, {sj}")
        e(f"s_lshl_b32 {a0}, {a0}, 6")
        e(f"s_lshl_b32 {a1}, {sw}, 21")
        e(f"s_add_u32 {oW13[0]}, {a0}, {a1}")
        e(f"s_lshl_b32 {a0}, {sx}, 21")
        e(f"s_lshl_b32 {a1}, {sj}, 6")
        e(f"s_add_u32 {a0}, {a0}, {a1}")
        e(f"s_lshl_b32 {a1}, {sw}, 19")
        e(f"s_add_u32 {oW11[0]}, {a0}, {a1}")
        e(f"s_lshl_b32 {oL[0]}, {sw}, 13")
        e(f"s_and_b32 {a0}, {sj}, 1")
        e(f"s_mul_i32 {a0}, {a0}, {p.wswap}")
        for r, sh in ((oW13, 17), (oW11, 15), (oL, 10)):
            e(f"s_lshl_b32 {a1}, {a0}, {sh}")
            e(f"s_sub_u32 {r[1]}, {r[0]}, {a1}")
            e(f"s_add_u32 {r[0]}, {r[0]}, {a1}")

    def tr_addr(dstreg, sh_hb, sh_g0, sh_g1):
        e(f"v_bfe_u32 {dstreg}, {lane}, 2, 1")
        for bit, sh in ((3, sh_hb), (4, sh_g0), (5, sh_g1)):
            e(f"v_bfe_u32 {t0}, {lane}, {bit}, 1")
            e(f"v_lshl_add_u32 {dstreg}, {t0}, {sh}, {dstreg}")
        e(f"v_lshlrev_b32 {dstreg}, 6, {dstreg}")
        e(f"v_and_b32 {t0}, 3, {lane}")
        e(f"v_lshl_add_u32 {dstreg}, {t0}, 3, {dstreg}")

    def tr_tile(W, addr, extra):
        for r in (0, 2, 4, 6):
            off = (32 * (r >> 2) + 2 * ((r >> 1) & 1)) * 64 + extra
            e(f"ds_read_b64_tr_b16 {W.sub(r, 2)}, {addr} offset:{off}")

    def stage(n):
        m, pitch = n >> 1, (11 if n >= 6 else 13)
        if n & 1 == 0:
            e(f"s_mov_b64 {tsrd[0:2]}, {wptr.sub(2 * m, 2)}")
        for i in range(8):
            k = 1 if i & p.wswap else 0
            e(f"s_add_u32 m0, {oL[k]}, {32768 * (n & 1) + 1024 * i}")
            e(f"s_add_u32 {a0}, {(oW11 if n >= 6 else oW13)[k]}, {(8 * (n & 1) + i) << (4 + pitch)}")
            vm.op(f"w{n}", f"buffer_load_dwordx4 {wa11 if n >= 6 else wa13}, {tsrd}, {a0} offen {p.wflag['C']} lds")

    def service(n):
        vm.wait(f"w{n}")
        if n < 6:
            for bb in range(2):
                for t in range(2):
                    tr_tile(WP.sub(8 * ((2 * (n & 1) + bb) * 6 + 2 * (n >> 1) + t), 8), tr1, 32768 * (n & 1) + 4096 * bb + 32 * t)
                e("s_waitcnt lgkmcnt(0)")
            stage(n + 2)
        else:
            e("s_barrier")
            for q in range(4):
                for bb in range(2):
                    tr_tile(WO(4 * q + 2 * (n & 1) + bb), tr3, 32768 * (n & 1) + 8192 * q + 4096 * bb)
                e("s_waitcnt lgkmcnt(0)")

    def hook(n):
        if n == 0:
            setup()
            stage(0)
            if st == "":
                S["vote"](e, R("s", partb.SLO - 8, 8))
            consts()
            init_loads()
            tr_addr(tr1, 3, 2, 4)
            tr_addr(tr3, 2, 4, 3)
            e(f"s_lshl_b32 {a1}, {sw}, 13")
            e(f"v_add_u32 {tr1}, {a1}, {tr1}")
            e(f"s_and_b32 {a1}, {sw}, 1")
            e(f"s_lshl_b32 {a1}, {a1}, 5")
            e(f"v_add_u32 {tr3}, {a1}, {tr3}")
            stage(1)
        elif n <= 7:
            if n == 1:
                init_stores()
            service(n - 1)
            if n == 4:
                S["signal_ready"](e, T0[0:4], vm)
        elif n == 9:
            service(7)

    partb.emit_rest(e, S, tag + "b", vm, hook)
    e("s_barrier")
    for r in (pa, pb, pd):
        e(f"v_mov_b32 {r}, 0")
    S["wait_ready"](e, fo[4:8], S["calibrate"] and st == "")
    if p.dbg == "pro":
        e(f"s_branch {dead}")

    e(f"s_mov_b32 {a0}, 63")
    cross_off(oFC, a0, a1)
    e(f"s_add_u32 {oFS[0]}, {oFS[0]}, {oFC}")
    for k in range(3):
        e(f"s_add_u32 {oFW[k]}, {oFW[k]}, {oFC}")
    e(f"s_mov_b32 {step}, 0")
    e(f"s_mov_b32 {oD}, {bD}")
    e(f"s_lshl_b32 {a0}, {sx}, 5")
    e(f"s_add_u32 {a0}, {a0}, {sj}")
    e(f"s_lshl_b32 {oKV}, {a0}, 11")
    e(f"s_add_u32 {oKV}, {oKV}, {LY.KX}")
    e(f"s_lshl_b32 {oKM}, {a0}, 9")
    e(f"s_add_u32 {oKM}, {oKM}, {LY.KM}")
    e(f"s_mov_b32 {spin}, 0")
    for i in range(4):
        e(f"s_mov_b32 {cf[i]}, 0")
    if p.stamps:
        e(f"s_lshl_b32 {a0}, {sw}, 13")
        e(f"s_add_u32 {a0}, {a0}, 32768")
        e(f"v_lshl_add_u32 {t3}, {lane}, 2, {a0}")
        for i in range(4):
            e(f"s_mov_b32 {fails[i]}, 0")
        for i in range(NST):
            e(f"s_mov_b32 {tsp(i)[0]}, 0")

    lab = {w: f"L_{tag}_w{w}" for w in range(4)}
    for w in (1, 2, 3):
        e(f"s_cmp_eq_u32 {sw}, {w}")
        e(f"s_cbranch_scc1 {lab[w]}")

    def spin_check():
        e(f"s_add_u32 {spin}, {spin}, 1")
        e(f"s_cmp_gt_u32 {spin}, {SPIN_MAX}")
        e(f"s_cbranch_scc1 {dead}")

    def load_kv_words():
        e(f"s_load_dword {kv[0]}, {ws[0:2]}, {oFK[0]} glc")
        e(f"s_load_dword {kv[1]}, {ws[0:2]}, {oFK[1]} glc")

    def wait_kv(name, need):
        if not p.flags:
            return
        e.label(name)
        e(f"s_min_u32 {a0}, {kv[0]}, {kv[1]}")
        e(f"s_cmp_gt_u32 {a0}, {need}")
        e(f"s_cbranch_scc1 {name}_ok")
        load_kv_words()
        spin_check()
        e("s_waitcnt lgkmcnt(0)")
        e(f"s_branch {name}")
        e.label(name + "_ok")

    def prefetch_kv():
        e(f"s_mov_b32 m0, {L_KV}")
        e(f"s_add_u32 {a0}, {oKV}, {LY.VX - LY.KX - 2048}")
        e(f"buffer_load_dwordx4 {l16}, {ws}, {oKV} offen sc1 lds")
        e(f"buffer_load_dwordx4 {l16}, {ws}, {oKV} offen offset:1024 sc1 lds")
        e(f"buffer_load_dwordx4 {l16}, {ws}, {a0} offen offset:2048 sc1 lds")
        e(f"buffer_load_dwordx4 {l16}, {ws}, {a0} offen offset:3072 sc1 lds")

    def publish_km():
        e(f"s_add_u32 {a0}, {oKM}, {LY.VM - LY.KM}")
        e(f"buffer_store_dwordx4 {Rr}, {kmst}, {ws}, {oKM} offen sc1")
        e(f"buffer_store_dword {A2[0]}, {l4}, {ws}, {a0} offen sc1")
        e(f"buffer_store_dword {A2[2]}, {l4}, {ws}, {a0} offen offset:256 sc1")

    def zero(acc):
        for i in range(acc.n):
            e(f"v_mov_b32 {acc[i]}, 0")

    for w in range(4):
        L = lambda n: f"L_{tag}_w{w}_{n}"
        order = [k ^ w for k in range(4)]

        def load_block(b, off):
            e(f"buffer_load_dwordx4 {F.sub(4 * b, 4)}, {dma}, {ws}, {off} offen offset:{1024 * b} sc1")

        def issue(off):
            for k, b in enumerate(order):
                load_block(b, off)
                if k < 3:
                    e("s_nop 3")

        def products(b):
            for t in range(4):
                e(f"{SM} {accP.sub(4 * t, 4)}, {F.sub(4 * b, 4)}, {WP.sub(8 * (b * 6 + t), 8)}, {idx}")

        def vsm(i):
            b, t = i >> 1, i & 1
            e(f"{SM} {accV.sub(4 * t, 4)}, {F.sub(4 * b, 4)}, {WP.sub(8 * (b * 6 + 4 + t), 8)}, {idx}")

        def fold2(acc):
            e(f"v_pk_add_f32 {fo[0:2]}, {acc[0:2]}, {acc[2:4]}")
            e(f"v_pk_add_f32 {fo[2:4]}, {acc[4:6]}, {acc[6:8]}")

        def read_parts(base):
            for i, q in enumerate(q for q in range(4) if q != w):
                e(f"ds_read_b128 {VP.sub(4 * i, 4)}, {l16} offset:{base + 1024 * q}")

        def sum_parts():
            for i in range(3):
                e(f"s_waitcnt lgkmcnt({2 - i})")
                e(f"v_pk_add_f32 {fo[0:2]}, {fo[0:2]}, {VP.sub(4 * i, 2)}")
                e(f"v_pk_add_f32 {fo[2:4]}, {fo[2:4]}, {VP.sub(4 * i + 2, 2)}")

        def last_step_exit():
            e(f"s_cmp_eq_u32 {step}, {p.nsteps - 1}")
            e(f"s_cbranch_scc1 {L('done')}")

        def dump_stamps():
            if p.stamps == "lite" and w == 3:
                e(f"s_cmp_lg_u32 {step}, 8")
                e(f"s_cbranch_scc1 {L('nolite')}")
                e(f"s_memrealtime {tsp(0)}")
                e.label(L("nolite"))
            if p.stamps is True and w < 3:
                e("s_waitcnt lgkmcnt(0)")
                for i in range(NST):
                    e(f"v_writelane_b32 {t1}, {tsp(i)[0]}, {i}")
                for i in range(4):
                    e(f"v_writelane_b32 {t1}, {fails[i]}, {12 + i}")
                e(f"ds_write_b32 {t3}, {t1} offset:{L_ST - 32768}")
                e(f"v_add_u32 {t3}, 64, {t3}")

        def word(addr, off):
            e(f"buffer_store_dword {stv}, {addr}, {ws}, {off} offen {st}")

        def gate(name, reg, addr, off, lanes):
            ld = f"buffer_load_dword {reg}, {addr}, {ws}, {off} offen sc1"
            e(f"s_mov_b32 exec_lo, {lanes}")
            e("s_mov_b32 exec_hi, 0")
            e.label(L(name + "poll"))
            for _ in range(10):
                e(f"v_cmp_gt_u32 vcc, {stv}, {reg}")
                e(ld)
                if p.twice:
                    e("s_nop 2")
                    e(ld)
                e(f"s_cbranch_vccz {L(name + 'go')}")
            e("s_waitcnt vmcnt(36)")
            e(f"s_add_u32 {spin}, {spin}, 1")
            e(f"s_cmp_lt_u32 {spin}, {SPIN_MAX}")
            e(f"s_cbranch_scc1 {L(name + 'poll')}")
            e(f"s_branch {dead}")
            e.label(L(name + "go"))
            e("s_mov_b64 exec, -1")

        e.label(lab[w])
        if w == 0:
            e(f"v_mov_b32 {PM[1]}, 0")
            e(f"v_mov_b32 {A2[1]}, 0")
            e(f"v_mov_b32 {A2[3]}, 0")
        if w == 1:
            e(f"s_mov_b32 {kv[0]}, 0")
            e(f"s_mov_b32 {kv[1]}, 0")
            wait_kv(L("kv0"), 0)
            prefetch_kv()
        zero(accP)
        zero(accV)
        e("s_waitcnt vmcnt(0)")
        e("s_barrier")
        issue(oD)
        e.label(L("loop"))
        dump_stamps()
        e(f"s_and_b32 {a0}, {step}, 3")
        e(f"s_add_u32 {oB}, {oD}, {LY.RING_B - LY.RING_D}")
        e(f"s_lshl_b32 {a1}, {a0}, 16")
        e(f"s_add_u32 {oA}, {bA}, {a1}")
        e(f"v_add_u32 {stv}, 1, {stv}")
        if w == 0:
            e(f"ds_read_b128 {KV[0:4]}, {kxr} offset:{L_KV}")
            e(f"ds_read_b128 {KV[4:8]}, {kxr} offset:{L_KV + 64}")
            e(f"ds_read_b128 {KV[8:12]}, {vxr} offset:{L_KV + 2048}")
            e(f"ds_read_b128 {KV[12:16]}, {vxr} offset:{L_KV + 2048 + 256}")
        e.label(L("dtry"))
        for k, b in enumerate(order):
            e(f"s_waitcnt vmcnt({3 - k})")
            products(b)
        if w == 0:
            stamp(1)
        e.nop(5)
        for t in range(4):
            e(f"v_pk_add_f32 {fo.sub(2 * t, 2)}, {accP.sub(4 * t, 2)}, {accP.sub(4 * t + 2, 2)}")
            e(f"ds_write2_b32 {rtw if t < 2 else rtk}, {fo[2 * t]}, {fo[2 * t + 1]} offset0:{16 * (t & 1)} offset1:{16 * (t & 1) + 36}")
            if t == 0:
                e(f"v_cmp_u_f32 vcc, {fo[0]}, {fo[1]}")
        e(f"s_cbranch_vccnz {L('dslow')}")
        e.label(L("dgood"))
        for i in range(4):
            vsm(i)
        e("s_waitcnt lgkmcnt(0)")
        e("s_barrier")
        if w == 0:
            stamp(0)
            for q in range(8):
                e(f"ds_read_b128 {T.sub(4 * q, 4)}, {rtr} offset:{L_RT + 2304 * (q >> 1) + 16 * (q & 1)}")
            vsm(4)
            e("s_waitcnt lgkmcnt(6)")
            for i in range(4):
                e(f"v_pk_mul_f32 {T.sub(2 * i, 2)}, {T.sub(2 * i, 2)}, {qf} op_sel_hi:[1,0]")
            for q in range(1, 4):
                e(f"s_waitcnt lgkmcnt({6 - 2 * q})")
                for i in range(4):
                    e(f"v_pk_fma_f32 {T.sub(2 * i, 2)}, {T.sub(8 * q + 2 * i, 2)}, {qf}, {T.sub(2 * i, 2)} op_sel_hi:[1,0,1]")
            for i in range(4):
                e(f"v_cvt_pk_bf16_f32 {Rr[i]}, {T[2 * i]}, {T[2 * i + 1]}")
            e.nop(2)
            e(f"{MF} {Sc[0:4]}, {KV[0:4]}, {Rr}, 0")
            e(f"{MF} {Sc[4:8]}, {KV[4:8]}, {Rr}, 0")
            e(f"{MF} {Sc[8:12]}, {Rr}, {Rr}, 0")
            e.nop(6)
            e(f"buffer_store_dwordx4 {Sc[0:4]}, {ast0}, {ws}, {oA} offen {st}")
            e(f"buffer_store_dwordx4 {Sc[4:8]}, {ast0}, {ws}, {oA} offen offset:128 {st}")
            e(f"buffer_store_dwordx4 {Sc[8:12]}, {ast2}, {ws}, {oA} offen {st}")
            stamp(2)

            def aloads():
                for q in range(3):
                    e(f"buffer_load_dwordx4 {X.sub(4 * q, 4)}, {aldx[q]}, {ws}, {oA} offen sc1")
                for q in range(4):
                    e(f"buffer_load_dword {XM[q]}, {aldm}, {ws}, {oA} offen offset:{1280 * q} sc1")

            def asum():
                ex = 0
                for q in range(3):
                    e(f"s_waitcnt vmcnt({ex + 6 - q})")
                    if q == p.bpos:
                        word(fbs, oFB)
                        ex = 1
                    src = Sc if q == 0 else Sx
                    e(f"v_pk_add_f32 {Sx[0:2]}, {src[0:2]}, {X.sub(4 * q, 2)}")
                    e(f"v_pk_add_f32 {Sx[2:4]}, {src[2:4]}, {X.sub(4 * q + 2, 2)}")
                e(f"v_maximum3_f32 {mx}, |{Sx[0]}|, |{Sx[1]}|, |{Sx[2]}|")
                e(f"s_waitcnt vmcnt({ex})")
                if p.bpos == 3:
                    word(fbs, oFB)
                e(f"v_pk_add_f32 {Sx[4:6]}, {XM[0:2]}, {XM[2:4]}")
                e(f"v_add_f32 {Sx[4]}, {Sx[4]}, {Sx[5]}")
                e(f"v_maximum3_f32 {mx}, {mx}, |{Sx[3]}|, |{Sx[4]}|")
                e(f"v_cmp_ngt_f32 vcc, {thr}, {mx}")

            def exps():
                for i in range(4):
                    e(f"v_exp_f32 {E[i]}, {Sx[i]}")
                e(f"v_exp_f32 {Em}, {Sx[4]}")

            vsm(5)
            vsm(6)
            vsm(7)
            e("s_barrier")
            stamp(10)
            aloads()
            read_parts(L_VP)
            fold2(accV)
            for i in range(4):
                e(f"v_mov_b32_dpp {Sc[i]}, {Sc[4 + i]} row_ror:8 row_mask:0xf bank_mask:0xc")
            sum_parts()
            e(f"v_cvt_pk_bf16_f32 {A2[0]}, {fo[0]}, {fo[1]}")
            e(f"v_cvt_pk_bf16_f32 {A2[2]}, {fo[2]}, {fo[3]}")
            last_step_exit()
            e.label(L("atry"))
            asum()
            exps()
            e(f"s_cbranch_vccnz {L('abad')}")
            e.label(L("agood"))
            if p.bpos == 4:
                word(fbs, oFB)
            stamp(3)
            e(f"v_cvt_pk_bf16_f32 {Pb[0]}, {E[0]}, {E[1]}")
            e(f"v_cvt_pk_bf16_f32 {Pb[1]}, {E[2]}, {E[3]}")
            e(f"v_mov_b32_dpp {Lt}, {Em} {DPP8}")
            e(f"v_mov_b32_dpp {Pb[2]}, {Pb[0]} {DPP8}")
            e(f"v_mov_b32_dpp {Pb[3]}, {Pb[1]} {DPP8}")
            e(f"v_cvt_pk_bf16_f32 {PM[0]}, {Em}, {Lt}")
            e(f"v_pk_add_f32 {E[0:2]}, {E[0:2]}, {E[2:4]}")
            e(f"{MF} {O[0:4]}, {KV[8:12]}, {Pb}, 0")
            e(f"v_add_f32 {Ls}, {E[0]}, {E[1]}")
            e(f"v_add_f32 {Ls}, {Ls}, {Em}")
            e(f"{MF} {O[4:8]}, {KV[12:16]}, {Pb}, 0")
            e("s_nop 0")
            e(f"v_add_f32_dpp {Lt}, {Ls}, {Ls} {DPP8}")
            e(f"v_add_f32_dpp {Lu}, {Ls}, {Ls} {DPP8}")
            e(f"{MH} {O[0:4]}, {A2[0:2]}, {PM}, {O[0:4]}")
            e("s_nop 0")
            e(f"v_permlane16_swap_b32 {Lt}, {Lu}")
            e(f"{MH} {O[4:8]}, {A2[2:4]}, {PM}, {O[4:8]}")
            e(f"v_add_f32 {Ls}, {Lt}, {Lu}")
            e(f"v_add_f32 {Lt}, {Lt}, {Lu}")
            e("s_nop 1")
            e(f"v_permlane32_swap_b32 {Ls}, {Lt}")
            e("s_nop 0")
            e(f"v_add_f32 {Ls}, {Ls}, {Lt}")
            e(f"v_rcp_f32 {E[0]}, {Ls}")
            e(f"s_mov_b32 m0, {L_OB + 4096 * w}")
            for i in range(4):
                e(f"v_pk_mul_f32 {O.sub(2 * i, 2)}, {O.sub(2 * i, 2)}, {E[0:2]} op_sel_hi:[1,0]")
            for i in range(4):
                e(f"v_cvt_pk_bf16_f32 {Ost[i]}, {O[2 * i]}, {O[2 * i + 1]}")
            e(f"buffer_store_dwordx4 {Ost}, {bst}, {ws}, {oB} offen {st}")
            stamp(4)
        else:
            for i in range(4, 8):
                if w == 1 and p.nA == i - 4:
                    word(fis, oFB)
                vsm(i)
            if w == 1 and p.nA == 4:
                word(fis, oFB)
            e.nop(8)
            fold2(accV)
            e(f"ds_write_b128 {vpw}, {fo[0:4]} offset:{L_VP}")
            if w == 1:
                gate("a", pa, fil, oFB, 15)
                e.nop(p.dA)
            e("s_waitcnt lgkmcnt(0)")
            e("s_barrier")
            last_step_exit()
            cross_off(oC, step, a1)
            e(f"s_mov_b32 m0, {L_OB + 4096 * w}")
            if w >= 2:
                zero(accO)
            if w == 3:
                e(f"s_xor_b32 {rD}, {oD}, 0x8000")
                e(f"s_xor_b32 {rA}, {oA}, 0x20000")
            if w == 1:
                e(f"s_add_u32 {a2}, {step}, 4")
                cross_off(rC, a2, a1)
                e(f"s_cmp_gt_u32 {a2}, 62")
                e(f"s_cselect_b32 {rC}, {LY.OOB >> 1}, {rC}")
                e(f"s_add_u32 {oKV}, {oKV}, 0x40000")
                if p.flags:
                    e(f"s_add_u32 {a2}, {step}, 1")
                    wait_kv(L("kv"), a2)
                    e(f"s_add_u32 {a1}, {step}, 3")
                    e(f"s_min_u32 {a1}, {a1}, 63")
                    e(f"s_cmp_gt_u32 {a0}, {a1}")
                    e(f"s_cbranch_scc1 {L('kvfresh')}")
                    load_kv_words()
                    e.label(L("kvfresh"))
                gate("b", pb, fbl, oFB, oth)
                e.nop(p.dB)

        def issue_out():
            for k, b in enumerate(order):
                e(f"buffer_load_dwordx4 {dma}, {ws}, {oB} offen offset:{1024 * b} sc1 lds")
                if k < 3:
                    e("s_nop 3")

        def chunk_barriers():
            for c in range(4):
                e(f"s_waitcnt vmcnt({3 - c})")
                e("s_barrier")

        def retry_check():
            if w == 0:
                e(f"v_mov_b32 {t0}, 1")
            e(f"ds_read_b32 {t0}, {zr} offset:{L_FL}")
            if w == 1:
                e(f"ds_read_b128 {Own}, {l16} offset:{L_CP}")
                e("s_waitcnt lgkmcnt(0)")
            else:
                e.label(L("fspin"))
                e(f"v_cmp_eq_u32 vcc, 1, {t0}")
                e(f"s_cbranch_vccnz {L('fspin')}")
            e(f"v_cmp_ne_u32 vcc, 0, {t0}")
            e(f"s_cbranch_vccnz {L('bretry')}")

        e("s_barrier")
        issue_out()
        e(f"s_add_u32 {step}, {step}, 1")
        e(f"s_and_b32 {a2}, {step}, 3")
        e(f"s_lshl_b32 {a2}, {a2}, 14")
        e(f"s_add_u32 {oD}, {bD}, {a2}")
        zero(accP)
        zero(accV)
        if w >= 2:
            e.label(L("bwait"))
            blocks = lambda c: [4 * q + (c ^ q) for q in range(4)]

            def rd(c):
                for b in blocks(c):
                    e(f"ds_read_b128 {T.sub(4 * b, 4)}, {obr} offset:{L_OB + 1024 * b}")
            e("s_waitcnt vmcnt(3)")
            e("s_barrier")
            rd(0)
            pending = 4
            for c in range(4):
                for i, b in enumerate(blocks(c)):
                    pending -= 1
                    e(f"s_waitcnt lgkmcnt({pending})")
                    e(f"{SM} {accO}, {T.sub(4 * b, 4)}, {WO(b)}, {idx}")
                    if c < 3 and i == 0:
                        e(f"s_waitcnt vmcnt({2 - c})")
                        e("s_barrier")
                        rd(c + 1)
                        pending += 4
            e.nop(8)
            e(f"v_pk_add_f32 {fo[0:2]}, {accO[0:2]}, {accO[2:4]}")
            e(f"v_cmpx_o_f32 vcc, {fo[0]}, {fo[1]}")
            e(f"buffer_store_dword {fo[0]}, {cst}, {ws}, {oC} offen sc1")
            e(f"buffer_store_dword {fo[1]}, {cst}, {ws}, {oC} offen offset:256 sc1")
            if w == 2:
                stamp(6)
                if p.stamps is True:
                    e(f"s_memrealtime {tsp(11)}")
            e("s_cmp_eq_u64 exec, -1")
            e(f"s_cbranch_scc0 {L('bslow')}")
            e.label(L("bgood"))
            e(f"ds_write2st64_b32 {l4}, {fo[0]}, {fo[1]} offset0:{L_CP // 256 + 2 * (w & 1)} offset1:{L_CP // 256 + 2 * (w & 1) + 1}")
            if w == 2:
                e(f"ds_write_b32 {zr}, {zr} offset:{L_FL}")
                e.nop(p.dM)
            else:
                e(f"s_add_u32 {a1}, {rD}, {LY.RING_B - LY.RING_D}")
                e(f"buffer_store_dwordx4 {sent}, {own16}, {ws}, {rD} offen {st}")
                e(f"buffer_store_dwordx4 {sent}, {own16}, {ws}, {a1} offen {st}")
                e(f"buffer_store_dwordx4 {sent}, {ownA}, {ws}, {rA} offen {st}")
                e(f"buffer_store_dwordx4 {sent}, {ownA2}, {ws}, {rA} offen offset:1024 {st}")
            e("s_waitcnt lgkmcnt(0)")
            e("s_barrier")
            if w == 2:
                e.nop(p.nD if p.nD > 0 else 60)
                if p.nD > 0:
                    word(fbs, oFD)
                gate("s", pd, fbl, oFD, oth)
                e.nop(p.dD)
        elif w == 0:
            def poll():
                if p.csep == 4:
                    e(f"s_load_dwordx4 {cf}, {ws[0:2]}, {oFS[0]} glc")
                else:
                    for k in range(3):
                        e(f"s_load_dword {cf[k]}, {ws[0:2]}, {oFS[0]} offset:{k * p.csep} glc")
            ex = 0
            e(f"s_add_u32 {a2}, {oKM}, {LY.VM - LY.KM}")
            for c in range(4):
                e(f"s_waitcnt vmcnt({3 - c + ex})")
                e("s_barrier")
                if c == p.cann and p.xann == "v":
                    e.nop(p.dN)
                    e(f"buffer_store_dword {stv}, {fcs}, {ws}, {oFC} offen sc1")
                    ex += 1
                if c == p.fpos and p.far:
                    e(f"buffer_store_dwordx4 {Rr}, {kmst}, {ws}, {oKM} offen sc1")
                    ex += 1
                if c == p.fpos + 1 and p.far:
                    e(f"buffer_store_dword {A2[0]}, {l4}, {ws}, {a2} offen sc1")
                    e(f"buffer_store_dword {A2[2]}, {l4}, {ws}, {a2} offen offset:256 sc1")
                    ex += 2
                if c in p.pre:
                    poll()
            e(f"s_add_u32 {oKM}, {oKM}, 0x10000")
            stamp(5)
            e.label(L("cpoll"))
            poll()
            for _ in range(p.npc):
                e(f"s_min_u32 {a0}, {cf[0]}, {cf[1]}")
                e(f"s_min_u32 {a0}, {a0}, {cf[2]}")
                e(f"s_cmp_ge_u32 {a0}, {step}")
                e(f"s_cbranch_scc1 {L('cgo')}")
            e(f"s_waitcnt lgkmcnt({p.thr})")
            e(f"s_add_u32 {spin}, {spin}, 1")
            e(f"s_cmp_lt_u32 {spin}, {SPIN_MAX}")
            e(f"s_cbranch_scc1 {L('cpoll')}")
            e(f"s_branch {dead}")
            e.label(L("cgo"))
            e.nop(p.dF)
            e.label(L("bjoin"))
            e("s_barrier")
            retry_check()
            if p.far:
                e(f"s_add_u32 {a1}, {oFK[0]}, 32")
                e("s_waitcnt vmcnt(0)")
                e(f"s_atomic_umax {step}, {ws[0:2]}, {a1}")
        else:
            def announce(c):
                if c == p.cann and p.xann == "s":
                    e.nop(p.dN)
                    for k in range(3):
                        e(f"s_atomic_umax {step}, {ws[0:2]}, {oFW[k]}")
            ex = 0
            announce(-1)
            for c in range(4):
                e(f"s_waitcnt vmcnt({3 - c + ex})")
                e("s_barrier")
                announce(c)
                if c == p.fpos and p.far:
                    e.nop(2)
                    prefetch_kv()
                    ex += 4
                if c == p.fpos + 1:
                    e(f"buffer_store_dwordx4 {sent}, {cin}, {ws}, {rC} offen sc1")
                    ex += 1

            def cloads():
                for k in range(3):
                    e(f"buffer_load_dwordx4 {Cx.sub(4 * k, 4)}, {cld[k]}, {ws}, {oC} offen sc1")

            def csum(first=False):
                ex = 0
                for k in range(3):
                    e(f"s_waitcnt vmcnt({2 - k + ex})")
                    if first and p.nD == -k:
                        word(fbs, oFD)
                        ex = 1
                    src = Own if k == 0 else Cs
                    e(f"v_pk_add_f32 {Cs[0:2]}, {src[0:2]}, {Cx.sub(4 * k, 2)}")
                    e(f"v_pk_add_f32 {Cs[2:4]}, {src[2:4]}, {Cx.sub(4 * k + 2, 2)}")

            def cpack():
                e(f"v_cvt_pk_bf16_f32 {Dp[0]}, {Cs[0]}, {Cs[1]}")
                e(f"v_cvt_pk_bf16_f32 {Dp[1]}, {Cs[2]}, {Cs[3]}")

            def cstore():
                e(f"buffer_store_dwordx2 {Dp}, {dst}, {ws}, {oD} offen {st}")

            e.label(L("bjoin"))
            e("s_barrier")
            cloads()
            stamp(7)
            retry_check()
            csum(True)
            e(f"v_cmpx_o_f32 vcc, {Cs[0]}, {Cs[1]}")
            e(f"v_cmpx_o_f32 vcc, {Cs[2]}, {Cs[3]}")
            cpack()
            cstore()
            e("s_cmp_eq_u64 exec, -1")
            e(f"s_cbranch_scc0 {L('cslow')}")
            e.label(L("cgood"))
            if p.nD == -3:
                word(fbs, oFD)
            stamp(8)
        e("s_barrier")
        if w == 0:
            stamp(9)
        issue(oD)
        e(f"s_branch {L('loop')}")

        e.label(L("dslow"))
        e(f"v_max_u32 {mx}, {F[0]}, {F[1]}")
        for q in range(1, 8):
            e(f"v_max3_u32 {mx}, {mx}, {F[2 * q]}, {F[2 * q + 1]}")
        e(f"v_cmp_eq_u32 vcc, -1, {mx}")
        e(f"s_cbranch_vccz {L('dgood')}")
        e.label(L("dagain"))
        for b in order:
            load_block(b, oD)
        count_fail(0)
        zero(accP)
        spin_check()
        e("s_waitcnt vmcnt(0)")
        e(f"v_max_u32 {mx}, {F[0]}, {F[1]}")
        for q in range(1, 8):
            e(f"v_max3_u32 {mx}, {mx}, {F[2 * q]}, {F[2 * q + 1]}")
        e(f"v_cmp_eq_u32 vcc, -1, {mx}")
        e(f"s_cbranch_vccnz {L('dagain')}")
        e(f"s_branch {L('dtry')}")
        if w >= 2:
            e.label(L("bslow"))
            e("s_mov_b64 exec, -1")
            e(f"v_max_u32 {mx}, {T[0]}, {T[1]}")
            for q in range(1, 32):
                e(f"v_max3_u32 {mx}, {mx}, {T[2 * q]}, {T[2 * q + 1]}")
            e(f"v_cmp_eq_u32 vcc, -1, {mx}")
            e(f"s_cbranch_vccnz {L('bagain')}")
            e(f"buffer_store_dword {fo[0]}, {cst}, {ws}, {oC} offen sc1")
            e(f"buffer_store_dword {fo[1]}, {cst}, {ws}, {oC} offen offset:256 sc1")
            e(f"s_branch {L('bgood')}")
            e.label(L("bagain"))
            count_fail(2)
            if w == 2:
                e(f"ds_write_b32 {zr}, {sent[0]} offset:{L_FL}")
            zero(accO)
            spin_check()
            e("s_waitcnt lgkmcnt(0)")
            e("s_barrier")
            issue_out()
            e(f"s_branch {L('bwait')}")
        else:
            e.label(L("bretry"))
            spin_check()
            e(f"s_mov_b32 m0, {L_OB + 4096 * w}")
            e("s_nop 0")
            issue_out()
            chunk_barriers()
            e(f"s_branch {L('bjoin')}")
        if w == 0:
            e.label(L("abad"))
            e(f"v_max3_u32 {mx}, {XM[0]}, {XM[1]}, {XM[2]}")
            e(f"v_max_u32 {mx}, {mx}, {XM[3]}")
            for q in range(6):
                e(f"v_max3_u32 {mx}, {mx}, {X[2 * q]}, {X[2 * q + 1]}")
            e(f"v_cmp_eq_u32 vcc, -1, {mx}")
            aloads()
            count_fail(1)
            spin_check()
            e(f"s_cbranch_vccnz {L('atry')}")
            e(f"v_max3_f32 {mx}, {Sx[0]}, {Sx[1]}, {Sx[2]}")
            e(f"v_max3_f32 {mx}, {mx}, {Sx[3]}, {Sx[4]}")
            e.nop(2)
            e(f"v_max_f32_dpp {Lt}, {mx}, {mx} {DPP8}")
            e(f"v_max_f32_dpp {Lu}, {mx}, {mx} {DPP8}")
            e.nop(2)
            e(f"v_permlane16_swap_b32 {Lt}, {Lu}")
            e.nop(2)
            e(f"v_max_f32 {mx}, {Lt}, {Lu}")
            e(f"v_max_f32 {Lt}, {Lt}, {Lu}")
            e.nop(2)
            e(f"v_permlane32_swap_b32 {mx}, {Lt}")
            e.nop(2)
            e(f"v_max_f32 {mx}, {mx}, {Lt}")
            for i in range(5):
                e(f"v_sub_f32 {Sx[i]}, {Sx[i]}, {mx}")
            exps()
            e(f"s_branch {L('agood')}")
        if w == 1:
            e.label(L("cslow"))
            e("s_mov_b64 exec, -1")
            count_fail(3)
            e(f"v_max_u32 {mx}, {Cx[0]}, {Cx[1]}")
            for q in range(1, 6):
                e(f"v_max3_u32 {mx}, {mx}, {Cx[2 * q]}, {Cx[2 * q + 1]}")
            e(f"v_cmp_eq_u32 vcc, -1, {mx}")
            e(f"s_cbranch_vccz {L('cfull')}")
            cloads()
            spin_check()
            csum()
            e(f"s_branch {L('cslow')}")
            e.label(L("cfull"))
            cpack()
            cstore()
            e(f"s_branch {L('cgood')}")

        e.label(L("done"))
        if w == 0:
            publish_km()
            e("s_waitcnt vmcnt(0)")
            e(f"buffer_store_dword {stv}, {fms}, {ws}, 0 offen sc1")
        if p.stamps == "lite":
            e(f"s_memrealtime {tsp(1)}")
            e(f"s_lshl_b32 {a0}, {sx}, 5")
            e(f"s_add_u32 {a0}, {a0}, {sj}")
            e(f"s_lshl_b32 {a0}, {a0}, 7")
            e(f"s_add_u32 {a0}, {a0}, {LY.STAMPS + 32 * w}")
            e("s_waitcnt vmcnt(0) lgkmcnt(0)")
            e(f"s_sub_u32 {a1}, {tsp(1)[0]}, {tsp(0)[0]}")
            for i in range(4):
                e(f"v_mov_b32 {T[i]}, {fails[i]}")
            e(f"v_mov_b32 {T[4]}, {a1}")
            e(f"buffer_store_dwordx4 {T[0:4]}, off, {ws}, {a0}")
            e(f"buffer_store_dword {T[4]}, off, {ws}, {a0} offset:16")
        if p.stamps is True and w < 3:
            e(f"s_lshl_b32 {a0}, {sx}, 5")
            e(f"s_add_u32 {a0}, {a0}, {sj}")
            e(f"s_lshl_b32 {a0}, {a0}, 14")
            e(f"s_add_u32 {a0}, {a0}, {LY.STAMPS + 4096 * w}")
            e("s_waitcnt vmcnt(0) lgkmcnt(0)")
            for i in range(4):
                e(f"v_add_u32 {t0}, {L_ST + 8192 * w}, {l16}")
                e(f"ds_read_b128 {T.sub(4 * i, 4)}, {t0} offset:{1024 * i}")
            e("s_waitcnt lgkmcnt(0)")
            for i in range(4):
                e(f"buffer_store_dwordx4 {T.sub(4 * i, 4)}, {l16}, {ws}, {a0} offen offset:{1024 * i}")
            e("s_waitcnt vmcnt(0)")
        e(f"s_branch {dead}")
```

```python
class Regs:
    def __init__(self, prefix, lo, hi):
        self.prefix, self.next, self.hi = prefix, lo, hi
        self.names = {}

    def alloc(self, name, n=1, align=1):
        base = (self.next + align - 1) // align * align
        assert base + n <= self.hi, f"out of {self.prefix} registers at {name}"
        self.next = base + n
        r = R(self.prefix, base, n)
        self.names[name] = r
        return r


class R:
    def __init__(self, prefix, base, n):
        self.prefix, self.base, self.n = prefix, base, n

    def __getitem__(self, i):
        if isinstance(i, slice):
            lo = i.start or 0
            hi = i.stop if i.stop is not None else self.n
            assert 0 <= lo < hi <= self.n, (lo, hi, self.n)
            return R(self.prefix, self.base + lo, hi - lo)
        assert 0 <= i < self.n, (i, self.n)
        return R(self.prefix, self.base + i, 1)

    def sub(self, lo, n):
        return self[lo:lo + n]

    def __str__(self):
        if self.n == 1:
            return f"{self.prefix}{self.base}"
        return f"{self.prefix}[{self.base}:{self.base + self.n - 1}]"

    __repr__ = __str__
    __format__ = lambda self, spec: str(self)


class Emit:
    def __init__(self):
        self.lines = []
        self.uid = 0

    def __call__(self, s):
        for l in s.split("\n"):
            l = l.strip()
            if l:
                self.lines.append(l if l.endswith(":") else " " + l)

    def label(self, name):
        self.lines.append(name + ":")

    def new_label(self, stem):
        self.uid += 1
        return f"L_{stem}_{self.uid}"

    def nop(self, states):
        while states > 0:
            k = min(states, 16)
            self(f"s_nop {k - 1}")
            states -= k

    def text(self):
        return "\n".join(self.lines)


class VM:
    def __init__(self, e, tags=()):
        self.e, self.ops = e, list(tags)

    def op(self, tag, text):
        self.e(text)
        self.ops.append(tag)

    def wait(self, tag):
        last = max(i for i, t in enumerate(self.ops) if t == tag)
        n = len(self.ops) - 1 - last
        assert n < 64
        self.e(f"s_waitcnt vmcnt({n})")
```

```python
from emit import Regs, R

M32 = "v_mfma_f32_32x32x16_bf16"
M16 = "v_mfma_f32_16x16x32_bf16"
WAVE_BYTES = 21888
COPY = 4160
U_OFF = 4 * COPY + 80
LOG2E = 0x3FB8AA3B
INV2PI = 0x3E22F983


BASE = 65536
VLO, SLO = 64, 84
LOAD_TAGS = ["par"] * 7 + ["touch"]


def regs():
    v = Regs("v", VLO, 216)
    c = {n: v.alloc(n) for n in "lane t0 t1 t2 t3 ua rowa".split()}
    c["Uraw"] = v.alloc("Uraw", 16, 2)
    c["G"] = v.alloc("G", 128, 2)
    s = Regs("s", SLO, 102)
    c["srd"] = s.alloc("srd", 4, 4)
    c["dsk"] = s.alloc("dsk", 4, 2)
    c.update({n: s.alloc(n) for n in "a0 a1 wb cnt sel0 sel1 hmask".split()})
    return c


def emit_pointers(e):
    e(f"s_load_dwordx16 {R('s', SLO - 16, 16)}, s[0:1], 64")
    e(f"s_load_dwordx2 {regs()['srd'][0:2]}, s[0:1], 56")


def emit_loads(e, S):
    c = regs()
    tid, base = R("v", 0, 1), BASE
    lane, t0, t1, rowa, Uraw, G = (c[n] for n in "lane t0 t1 rowa Uraw G".split())
    srd, dsk, a0, a1, wb, sel0, sel1, hmask = (c[n] for n in "srd dsk a0 a1 wb sel0 sel1 hmask".split())
    pp = R("s", SLO - 16, 16)
    sw, cu = S["w"], S["cu"]
    e(f"s_mul_i32 {wb}, {sw}, {WAVE_BYTES}")
    e(f"s_add_u32 {wb}, {wb}, {base}")
    e(f"v_and_b32 {lane}, 63, {tid}")
    e(f"s_lshl_b32 {a0}, {cu}, 2")
    e(f"s_add_u32 {a0}, {a0}, {sw}")
    e(f"s_lshl_b32 {a1}, {a0}, 8")
    e(f"v_lshl_add_u32 {t0}, {lane}, 2, {a1}")
    e(f"s_lshl_b32 {a1}, {a0}, 1")
    e(f"v_mov_b32 {t1}, {a1}")
    e(f"s_mov_b32 {srd[2]}, {4 << 20}")
    e(f"s_mov_b32 {srd[3]}, 0x20000")
    e(f"s_mov_b32 {sel0}, 0x05040100")
    e(f"s_mov_b32 {sel1}, 0x07060302")
    e(f"s_mov_b32 {hmask}, 0xffff0000")
    e(f"v_lshlrev_b32 {rowa}, 14, {tid}")
    e(f"s_lshl_b32 {a1}, {cu}, 3")
    P = G[0:6]
    for i in range(6):
        e(f"global_load_dword {P[i]}, {t0}, {pp.sub(2 * i, 2)}")
    e(f"global_load_ushort {G[6]}, {t1}, {pp[12:14]}")
    e(f"s_load_dwordx2 {dsk[0:2]}, {pp[14:16]}, {a1}")
    e(f"s_and_b32 {a0}, {cu}, 15")
    e(f"s_lshl_b32 {a0}, {a0}, 18")
    e(f"s_add_u32 {a0}, {a0}, {a1}")
    e(f"v_lshrrev_b32 {t0}, 1, {tid}")
    e(f"v_lshlrev_b32 {t0}, 11, {t0}")
    e(f"buffer_load_dword {Uraw[0]}, {t0}, {srd}, {a0} offen")


def emit_rest(e, S, tag, vm, hook):
    c = regs()
    tid, base = R("v", 0, 1), BASE
    lane, t0, t1, t2, t3, ua, rowa, Uraw, G = (c[n] for n in "lane t0 t1 t2 t3 ua rowa Uraw G".split())
    srd, dsk, a0, a1, wb, cnt, sel0, sel1, hmask = (c[n] for n in "srd dsk a0 a1 wb cnt sel0 sel1 hmask".split())
    cu = S["cu"]
    P = G[0:6]
    L = lambda n: f"L_{tag}_{n}"
    if S.get("prof"):
        inner = hook

        def hook(n):
            for k in range(2):
                if k:
                    inner(n)
                e("s_memrealtime s[100:101]")
                e("s_waitcnt lgkmcnt(0)")
                e(f"v_writelane_b32 v254, s100, {2 * n + k}")
    hook(0)
    Lg = G[112:120]
    n_, g_ = t2, t3
    e(f"v_and_b32 {n_}, 15, {lane}")
    e(f"v_lshrrev_b32 {g_}, 4, {lane}")
    e(f"v_cvt_f32_u32 {Lg[0]}, {n_}")
    e(f"v_mul_f32 {Lg[6]}, 0x41800000, {Lg[0]}")
    e(f"v_lshl_add_u32 {t0}, {n_}, 1, 0")
    e(f"v_add_u32 {t0}, 256, {t0}")
    e(f"v_and_b32 {t1}, 3, {n_}")
    e(f"v_lshlrev_b32 {t1}, 2, {t1}")
    e(f"v_lshrrev_b32 {ua}, 2, {n_}")
    e(f"v_lshl_add_u32 {t1}, {ua}, 8, {t1}")
    e(f"v_cmp_gt_u32 vcc, 8, {n_}")
    e.nop(2)
    e(f"v_cndmask_b32 {t0}, {t1}, {t0}, vcc")
    e(f"v_cvt_f32_u32 {Lg[2]}, {t0}")
    e(f"v_and_b32 {t0}, 1, {n_}")
    e(f"v_lshlrev_b32 {t0}, 3, {t0}")
    e(f"v_lshrrev_b32 {t1}, 1, {n_}")
    e(f"v_min_u32 {t1}, 4, {t1}")
    e(f"v_lshl_add_u32 {t0}, {t1}, 8, {t0}")
    e(f"v_add_u32 {t0}, 1024, {t0}")
    e(f"v_cvt_f32_u32 {Lg[4]}, {t0}")
    vm.wait("par")
    dt = G[7]
    e(f"v_lshlrev_b32 {dt}, 16, {G[6]}")
    e(f"v_mul_f32 {dt}, {LOG2E:#x}, {dt}")
    e(f"v_exp_f32 {dt}, {dt}")
    e.nop(1)
    e(f"v_cvt_pk_bf16_f32 {dt}, {dt}, {dt}")
    e(f"v_and_b32 {dt}, {hmask}, {dt}")
    e(f"v_lshl_add_u32 {t0}, {lane}, 5, {wb}")
    for hf in range(2):
        x = G[8:14]
        for i in range(6):
            e(f"v_lshlrev_b32 {x[i]}, 16, {P[i]}" if hf == 0 else f"v_and_b32 {x[i]}, {hmask}, {P[i]}")
        o = G.sub(16 + 4 * hf, 4)
        for i in range(4):
            e(f"v_mul_f32 {x[i]}, {dt}, {x[i]}")
        e(f"v_mul_f32 {o[0]}, {LOG2E:#x}, {x[0]}")
        e(f"v_mul_f32 {o[1]}, {INV2PI:#x}, {x[1]}")
        e(f"v_mul_f32 {o[2]}, {x[4]}, {x[2]}")
        e(f"v_fma_f32 {o[2]}, -{x[5]}, {x[3]}, {o[2]}")
        e(f"v_mul_f32 {o[3]}, {x[4]}, {x[3]}")
        e(f"v_fma_f32 {o[3]}, {x[5]}, {x[2]}, {o[3]}")
        e(f"ds_write_b128 {t0}, {o} offset:{COPY + 16 * hf}")
    PR, FR, AC, X = G[0:16], G[16:32], G[32:44], G[44:76]
    for i in range(12):
        e(f"v_mov_b32 {AC[i]}, 0")
    pa = ua
    e(f"v_lshl_add_u32 {pa}, {g_}, 6, {wb}")
    e(f"s_mov_b32 {cnt}, 0")
    e("s_waitcnt lgkmcnt(0)")
    for part, stop in enumerate((2, 5, 8)):
        e.label(L(f"kg{part}"))
        for q in range(4):
            e(f"ds_read_b128 {PR.sub(4 * q, 4)}, {pa} offset:{COPY + 16 * q}")
        e(f"v_add_u32 {pa}, 256, {pa}")
        for q in range(4):
            e(f"s_waitcnt lgkmcnt({3 - q})")
            pr = PR.sub(4 * q, 4)
            xs = [X.sub(4 * t, 4) for t in range(4)]
            for t in range(4):
                e(f"v_pk_mul_f32 {xs[t][0:2]}, {pr[0:2]}, {Lg.sub(2 * t, 2)} op_sel_hi:[1,0]")
            for t in range(4):
                e(f"v_fract_f32 {xs[t][1]}, {xs[t][1]}")
            for t in range(4):
                e(f"v_exp_f32 {xs[t][0]}, {xs[t][0]}")
                e(f"v_cos_f32 {xs[t][2]}, {xs[t][1]}")
                e(f"v_sin_f32 {xs[t][3]}, {xs[t][1]}")
            for t in range(4):
                e(f"v_pk_mul_f32 {xs[t][2:4]}, {xs[t][2:4]}, {xs[t][0:2]} op_sel_hi:[1,0]")
            z = xs[3]
            e(f"v_pk_mul_f32 {z[0:2]}, {z[2:4]}, {pr[2:4]} op_sel_hi:[0,1] neg_hi:[0,1]")
            for t in range(3):
                e(f"v_cvt_pk_bf16_f32 {FR[4 * t + q]}, {xs[t][2]}, {xs[t][3]}")
            e(f"v_pk_fma_f32 {z[0:2]}, {z[2:4]}, {pr[2:4]}, {z[0:2]} op_sel:[1,1,0] op_sel_hi:[1,0,1] neg_lo:[0,1,0] neg_hi:[0,1,0]")
            e(f"v_cvt_pk_bf16_f32 {FR[12 + q]}, {z[0]}, {z[1]}")
        e(f"s_add_u32 {cnt}, {cnt}, 1")
        e(f"s_cmp_lt_u32 {cnt}, {stop}")
        for t in range(3):
            e(f"{M16} {AC.sub(4 * t, 4)}, {FR.sub(4 * t, 4)}, {FR[12:16]}, {AC.sub(4 * t, 4)}")
        e(f"s_cbranch_scc1 {L(f'kg{part}')}")
        if part == 1:
            e(f"s_lshl_b32 {a1}, {cu}, 3")
            for r in range(8):
                if r and r % 2 == 0:
                    e(f"s_add_u32 {a1}, {a1}, 4096")
                vm.op("u", f"buffer_load_dwordx2 {Uraw.sub(2 * r, 2)}, {rowa}, {srd}, {a1} offen offset:{2048 * (r & 1)}")
        hook(1 + part)
    e(f"v_lshlrev_b32 {t0}, 5, {n_}")
    e(f"v_lshl_add_u32 {t0}, {g_}, 3, {t0}")
    e(f"v_add_u32 {t0}, {wb}, {t0}")
    e(f"v_lshlrev_b32 {t1}, 4, {n_}")
    e(f"v_lshl_add_u32 {t1}, {g_}, 3, {t1}")
    e(f"v_lshlrev_b32 {ua}, 3, {n_}")
    e(f"v_lshl_add_u32 {ua}, {g_}, 7, {ua}")
    e(f"v_cmp_gt_u32 vcc, 2, {g_}")
    e.nop(2)
    e(f"v_cndmask_b32 {t1}, {ua}, {t1}, vcc")
    e(f"v_add_u32 {t1}, {wb}, {t1}")
    e(f"v_lshlrev_b32 {ua}, 2, {n_}")
    e(f"v_lshl_add_u32 {ua}, {g_}, 7, {ua}")
    e(f"v_add_u32 {ua}, {wb}, {ua}")
    for i in range(6):
        e(f"v_cvt_pk_bf16_f32 {X[i]}, {AC[2 * i]}, {AC[2 * i + 1]}")
    e(f"ds_write_b64 {t0}, {X[0:2]}")
    e(f"ds_write_b64 {t1}, {X[2:4]} offset:512")
    e(f"ds_write_b32 {ua}, {X[4]} offset:1024")
    e(f"ds_write_b32 {ua}, {X[5]} offset:1088")
    e(f"v_lshrrev_b32 {t0}, 2, {tid}")
    e(f"v_mul_u32_u24 {t0}, 80, {t0}")
    e(f"v_and_b32 {t1}, 3, {tid}")
    e(f"v_lshl_add_u32 {ua}, {t1}, 4, {t0}")
    e(f"v_add_u32 {ua}, {base + U_OFF}, {ua}")
    e(f"v_add_u32 {G[127]}, {2 * WAVE_BYTES}, {ua}")
    uaddr = lambda c: (ua if c < 2 else G[127], (c & 1) * WAVE_BYTES)
    vm.wait("u")
    for c in range(4):
        d = X.sub(8 + 4 * c, 4)
        for i in range(4):
            e(f"v_perm_b32 {d[i]}, {Uraw[4 * i + 2 + (c >> 1)]}, {Uraw[4 * i + (c >> 1)]}, {sel1 if c & 1 else sel0}")
        e(f"ds_write_b128 {uaddr(c)[0]}, {d} offset:{uaddr(c)[1]}")
    D = G[0:32]
    Z = G[32:44]
    e(f"v_lshlrev_b32 {t0}, 3, {lane}")
    e(f"v_sub_u32 {t0}, 2047, {t0}")
    e(f"v_cvt_f32_u32 {t1}, {t0}")
    e(f"s_sub_u32 {a0}, {wb}, {2 * (0x4300 - 128)}")
    e("s_waitcnt lgkmcnt(0)")
    for wv in range(4):
        ad = X[0:8]
        for i in range(4):
            k = 512 * wv + 2 * i
            e(f"v_subrev_f32 {Z[0]}, {f32(k)}, {t1}")
            e(f"v_subrev_f32 {Z[1]}, {f32(k + 1)}, {t1}")
            e(f"v_cvt_pk_bf16_f32 {Z[2]}, {Z[0]}, {Z[1]}")
            e(f"v_and_b32 {Z[0]}, 0xffff, {Z[2]}")
            e(f"v_lshrrev_b32 {Z[1]}, 16, {Z[2]}")
            if wv == 3:
                for h in range(2):
                    e(f"v_subrev_u32 {Z[2]}, {k + h}, {t0}")
                    e(f"v_min_u32 {Z[2]}, 128, {Z[2]}")
                    e(f"v_add_u32 {Z[2]}, {0x4300 - 128}, {Z[2]}")
                    e(f"v_max_u32 {Z[h]}, {Z[h]}, {Z[2]}")
            e(f"v_lshl_add_u32 {ad[2 * i]}, {Z[0]}, 1, {a0}")
            e(f"v_lshl_add_u32 {ad[2 * i + 1]}, {Z[1]}, 1, {a0}")
        e("s_waitcnt lgkmcnt(0)")
        for i in range(4):
            e(f"ds_read_u16 {D[8 * wv + i]}, {ad[2 * i]}")
            e(f"ds_read_u16 {D[8 * wv + 4 + i]}, {ad[2 * i + 1]}")
    ca = t0
    e(f"v_lshl_add_u32 {ca}, {lane}, 4, {wb}")
    for i in range(4):
        e(f"v_mov_b32 {Z[i]}, 0")
    e(f"v_lshrrev_b32 {t1}, 2, {lane}")
    e(f"v_mul_u32_u24 {t1}, {COPY - 64}, {t1}")
    e(f"v_add_u32 {t1}, 4096, {t1}")
    e(f"v_cmp_gt_u32 vcc, 16, {lane}")
    e(f"v_mov_b32 {t2}, {4 * COPY - 256}")
    e("s_nop 0")
    e(f"v_cndmask_b32 {t1}, {t2}, {t1}, vcc")
    e(f"v_add_u32 {t1}, {t1}, {ca}")
    e("s_waitcnt lgkmcnt(0)")
    e("s_mov_b64 exec, 0x1fffff")
    e(f"ds_write_b128 {t1}, {Z[0:4]}")
    e("s_mov_b64 exec, -1")
    for wv in range(4):
        for i in range(4):
            e(f"v_lshl_or_b32 {D[8 * wv + i]}, {D[8 * wv + 4 + i]}, 16, {D[8 * wv + i]}")
        e(f"ds_write_b128 {ca}, {D.sub(8 * wv, 4)} offset:{3 * COPY + 1024 * wv}")
    e("s_waitcnt lgkmcnt(0)")
    for wv in range(4):
        e(f"ds_read_b64 {D.sub(8 * wv + 4, 2)}, {ca} offset:{3 * COPY + 1024 * wv + 16}")
    for wv in range(4):
        d = D.sub(8 * wv, 8)
        zz = X.sub(12 * (wv & 1), 12)
        if wv == 0:
            e("s_waitcnt lgkmcnt(0)")
        for i in range(4):
            e(f"v_alignbit_b32 {zz[i]}, {d[i + 1]}, {d[i]}, 16")
            e(f"v_mov_b32 {zz[4 + i]}, {d[i + 1]}")
            e(f"v_alignbit_b32 {zz[8 + i]}, {d[i + 2]}, {d[i + 1]}, 16")
        for k in range(3):
            e(f"ds_write_b128 {ca}, {zz.sub(4 * k, 4)} offset:{(2 - k) * COPY + 1024 * wv}")
    aa, b1, b0, b0c = t0, t1, t2, t3
    e(f"v_and_b32 {b1}, 3, {lane}")
    e(f"v_mul_u32_u24 {aa}, {COPY}, {b1}")
    e(f"v_bfe_u32 {b1}, {lane}, 3, 1")
    e(f"v_bfe_u32 {b0}, {lane}, 2, 1")
    e(f"v_lshl_add_u32 {b1}, {b0}, 1, {b1}")
    e(f"v_bfe_u32 {b0}, {lane}, 4, 1")
    e(f"v_lshl_add_u32 {b1}, {b0}, 2, {b1}")
    e(f"v_lshlrev_b32 {b1}, 3, {b1}")
    e(f"v_sub_u32 {aa}, {aa}, {b1}")
    e(f"v_lshrrev_b32 {b0}, 5, {lane}")
    e(f"v_lshl_add_u32 {aa}, {b0}, 4, {aa}")
    e(f"s_add_u32 {a0}, {wb}, {2 * 2044 - 2048}")
    e(f"v_add_u32 {aa}, {a0}, {aa}")
    e(f"v_and_b32 {b1}, 31, {lane}")
    e(f"v_mul_u32_u24 {b1}, 80, {b1}")
    e(f"v_lshl_add_u32 {b0}, {b0}, 4, {b1}")
    e(f"s_add_u32 {a0}, {wb}, {U_OFF}")
    e(f"v_add_u32 {b0}, {a0}, {b0}")
    e(f"v_mov_b32 {G[126]}, {b0}")
    e(f"v_mov_b32 {b0c}, {b0}")
    e(f"s_sub_u32 {a1}, {a0}, 80")
    Y = [G[0:16], G[16:32]]
    SET = [G[32:48], G[48:64]]
    for i in range(32):
        e(f"v_mov_b32 {G[i]}, 0")

    def reads(k):
        st, off = SET[k], (32 if k == 0 else 0)
        e(f"ds_read_b64 {st[0:2]}, {aa} offset:{2048 + off}")
        e(f"ds_read_b64 {st[2:4]}, {aa} offset:{2048 + off + 8}")
        e(f"ds_read_b128 {st[8:12]}, {b0} offset:{2560 + off}")
        e(f"ds_read_b128 {st[12:16]}, {b0c} offset:{off}")
        e(f"ds_read_b64 {st[4:6]}, {aa} offset:{off}")
        e(f"ds_read_b64 {st[6:8]}, {aa} offset:{off + 8}")

    def prods(k, mid=()):
        st = SET[k]
        e("s_waitcnt lgkmcnt(6)")
        e(f"{M32} {Y[1]}, {st[0:4]}, {st[8:12]}, {Y[1]}")
        for x in mid:
            e(x)
        e(f"{M32} {Y[0]}, {st[0:4]}, {st[12:16]}, {Y[0]}")
        e(f"{M32} {Y[1]}, {st[4:8]}, {st[12:16]}, {Y[1]}")

    e("s_waitcnt lgkmcnt(0)")
    e("s_barrier")
    hook(4)
    reads(0)
    for part in range(4):
        e(f"s_mov_b32 {cnt}, 0")
        e.label(L(f"cv{part}"))
        reads(1)
        prods(0, [f"v_subrev_u32 {aa}, 64, {aa}", f"v_subrev_u32 {b0}, 80, {b0}", f"v_max_i32 {b0c}, {a1}, {b0}"])
        reads(0)
        prods(1, [f"s_add_u32 {cnt}, {cnt}, 1", f"s_cmp_lt_u32 {cnt}, 8"])
        e(f"s_cbranch_scc1 {L(f'cv{part}')}")
        hook(5 + part)
    e(f"s_load_dwordx2 {srd[0:2]}, s[0:1], 128")
    e(f"s_mov_b32 {srd[2]}, {8 << 20}")
    e(f"s_mov_b32 {srd[3]}, 0x20000")
    e(f"s_lshl_b32 {dsk[2]}, {dsk[1]}, 16")
    e(f"s_and_b32 {dsk[3]}, {dsk[1]}, {hmask}")
    e(f"s_and_b32 {dsk[1]}, {dsk[0]}, {hmask}")
    e(f"s_lshl_b32 {dsk[0]}, {dsk[0]}, 16")
    e(f"v_lshlrev_b32 {rowa}, 1, {rowa}")
    e(f"s_lshl_b32 {a1}, {cu}, 3")
    e(f"s_add_u32 {a1}, {a1}, 2048")
    e("s_waitcnt lgkmcnt(0)")
    e.nop(2)
    PK = G[64:80]
    for t in range(2):
        for i in range(8):
            e(f"v_cvt_pk_bf16_f32 {PK[8 * t + i]}, {Y[t][2 * i]}, {Y[t][2 * i + 1]}")
        for q in range(2):
            e(f"ds_write_b128 {G[126]}, {PK.sub(8 * t + 4 * q, 4)} offset:{2560 * t + 32 * q}")
    e("s_waitcnt lgkmcnt(0)")
    e("s_barrier")
    YC = G[0:16]
    for c in range(4):
        e(f"ds_read_b128 {YC.sub(4 * c, 4)}, {uaddr(c)[0]} offset:{uaddr(c)[1]}")
    SK = G[16:48]
    for r in range(8):
        for h in range(2):
            u, d = Uraw[2 * r + h], SK.sub(4 * r + 2 * h, 2)
            e(f"v_lshlrev_b32 {d[0]}, 16, {u}")
            e(f"v_and_b32 {d[1]}, {hmask}, {u}")
            e(f"v_pk_mul_f32 {d}, {d}, {dsk.sub(2 * h, 2)}")
            e(f"v_cvt_pk_bf16_f32 {u}, {d[0]}, {d[1]}")
            e(f"v_lshlrev_b32 {d[0]}, 16, {u}")
            e(f"v_and_b32 {d[1]}, {hmask}, {u}")
    e("s_waitcnt lgkmcnt(0)")
    yy = G[48:52]
    for r in range(8):
        for c in range(4):
            src = YC[4 * c + (r >> 1)]
            e(f"v_and_b32 {yy[c]}, {hmask}, {src}" if r & 1 else f"v_lshlrev_b32 {yy[c]}, 16, {src}")
        for h in range(2):
            d = SK.sub(4 * r + 2 * h, 2)
            e(f"v_pk_add_f32 {d}, {d}, {yy.sub(2 * h, 2)}")
            e(f"v_cvt_pk_bf16_f32 {Uraw[2 * r + h]}, {d[0]}, {d[1]}")
        vm.op("out", f"buffer_store_dwordx2 {Uraw.sub(2 * r, 2)}, {rowa}, {srd}, {a1} offen")
        e(f"s_add_u32 {a1}, {a1}, 4096")
    hook(9)


def f32(x):
    import struct
    return f"{struct.unpack('<I', struct.pack('<f', float(x)))[0]:#x}"
```

```python
from emit import Regs, R, VM
import partb
import layout as LY

M32 = "v_mfma_f32_32x32x16_bf16"
M8 = "v_mfma_f32_32x32x8_bf16"
XBUF = 66048
OBUF = 65536
SCALE_LOG2E = 0x3E0293EE
SPIN_MAX = 400000


def emit_proj(e, S, p, role, tag):
    v = Regs("v", 0, 256)
    tid, lane, l16, t0, t1, t2, fsw, oob, fad, fval = (v.alloc(n) for n in
        "tid lane l16 t0 t1 t2 fsw oob fad fval".split())
    xr = v.alloc("xr", 2)
    kma, vma, osta, vw = (v.alloc(n) for n in ("kma", "vma", "osta", "vw"))
    ring = v.alloc("ring", 32, 2)
    acc = [v.alloc(f"acc{i}", 16, 2) for i in range(2)]
    G = v.alloc("G", 176, 2)
    pk = G[0:8]
    W = R("a", 0, 256)
    ws, tsrd = S["ws"], S["tsrd"]
    sj, sw = S["j"], S["w"]
    s = S["alloc"]
    src = s.alloc(tag + "src", 4, 4)
    seg, a0, a1, a2, oX, oL, oY, oF, spin, oS, pre = (s.alloc(tag + n) for n in
        "seg a0 a1 a2 oX oL oY oF spin oS pre".split())
    hd, go, oW, ret = (s.alloc(tag + n) for n in "hd go oW ret".split())
    fl = s.alloc(tag + "fl", 16, 4)
    dead = S["exit"]
    isO = role == "O"
    BUF = OBUF if isO else XBUF
    L = lambda n: f"L_{tag}_{n}"

    def spin_check():
        e(f"s_add_u32 {spin}, {spin}, 1")
        e(f"s_cmp_gt_u32 {spin}, {SPIN_MAX}")
        e(f"s_cbranch_scc1 {dead}")

    def consts():
        e(f"v_and_b32 {lane}, 63, {tid}")
        e(f"v_lshlrev_b32 {l16}, 4, {lane}")
        e(f"v_bfrev_b32 {oob}, 1")
        e(f"s_mov_b32 {spin}, 0")
        e(f"v_and_b32 {t2}, 0x13, {lane}")
        e(f"v_bfe_u32 {t0}, {lane}, 2, 1")
        e(f"v_lshl_add_u32 {t2}, {t0}, 3, {t2}")
        e(f"v_bfe_u32 {t0}, {lane}, 3, 1")
        e(f"v_lshl_add_u32 {t2}, {t0}, 2, {t2}")
        e(f"v_lshrrev_b32 {t1}, 5, {lane}")
        e(f"v_lshlrev_b32 {t0}, 9, {t1}")
        e(f"v_lshl_add_u32 {fsw}, {t2}, 4, {t0}")
        if isO:
            e(f"v_mov_b32 {xr[0]}, {l16}")
        else:
            if role != "V":
                e(f"v_and_b32 {t0}, 31, {lane}")
            e(f"v_mul_u32_u24 {t0}, 2064, {t2 if role == 'V' else t0}")
            e(f"v_lshl_add_u32 {xr[0]}, {t1}, 4, {t0}")
        e(f"v_add_u32 {xr[1]}, {BUF}, {xr[0]}")
        if not isO:
            e(f"s_lshr_b32 {pre}, {sj}, 3")
            e(f"s_add_u32 {pre}, {pre}, {4 * 'QVK'.index(role)}")
            e(f"s_and_b32 {hd}, {sj}, 7")
            e(f"s_lshl_b32 {hd}, {hd}, 2")
            e(f"s_add_u32 {hd}, {hd}, {sw}")
            e(f"v_mad_u32_u24 {t0}, {lane}, 12, {pre}")
            e(f"v_cmp_gt_u32 vcc, 64, {t0}")
            e(f"s_lshl_b32 {a0}, {hd}, 2")
            e(f"s_add_u32 {a0}, {a0}, {LY.FO}")
            e(f"v_lshl_add_u32 {t0}, {t0}, 7, {a0}")
            e(f"v_cndmask_b32 {osta}, {oob}, {t0}, vcc")
            e(f"s_lshl_b32 {a0}, {sj}, 7")
            e(f"s_add_u32 {a0}, {a0}, {LY.FK + dict(K=0, V=16, Q=48)[role]}")
            e(f"s_lshl_b32 {a1}, {sw}, 2")
        else:
            e(f"s_and_b32 {a0}, {sj}, 7")
            e(f"s_lshl_b32 {a0}, {a0}, 2")
            e(f"s_add_u32 {a0}, {a0}, {sw}")
            e(f"s_lshl_b32 {a0}, {a0}, 7")
            e(f"s_add_u32 {a0}, {a0}, {LY.FP}")
            e(f"s_mov_b32 {oS}, {a0}")
            e(f"s_lshr_b32 {a1}, {sj}, 3")
            e(f"s_lshl_b32 {a1}, {a1}, 2")
        e(f"s_add_u32 {a0}, {a0}, {a1}")
        e(f"v_mov_b32 {t0}, {a0}")
        e(f"v_cmp_eq_u32 vcc, 0, {lane}")
        e(f"v_mov_b32 {fval}, 0")
        e("s_nop 0")
        e(f"v_cndmask_b32 {fad}, {oob}, {t0}, vcc")

    pitch = 11 if isO else 13
    wa, tra = kma, vma
    vm = VM(e, partb.LOAD_TAGS)

    def setup():
        e(f"s_mov_b64 {tsrd[0:2]}, {S['wptr'].sub(2 * 'QKVO'.index(role), 2)}")
        e(f"s_mov_b32 {tsrd[2]}, {8 << 20}")
        e(f"s_mov_b32 {tsrd[3]}, 0x20000")
        e(f"v_and_b32 {lane}, 63, {tid}")
        e(f"v_lshrrev_b32 {wa}, 4, {lane}")
        e(f"v_lshlrev_b32 {wa}, {pitch}, {wa}")
        e(f"v_and_b32 {t0}, 15, {lane}")
        e(f"v_lshl_add_u32 {wa}, {t0}, 4, {wa}")
        if isO:
            e(f"s_lshr_b32 {oX}, {sj}, 3")
            e(f"s_lshl_b32 {oX}, {oX}, 21")
            e(f"s_and_b32 {a1}, {sj}, 7")
            e(f"s_lshl_b32 {a1}, {a1}, 8")
            e(f"s_add_u32 {oX}, {oX}, {a1}")
        else:
            e(f"s_lshl_b32 {oX}, {sj}, 8")
        e(f"s_lshl_b32 {a1}, {sw}, {5 + pitch}")
        e(f"s_add_u32 {oX}, {oX}, {a1}")
        e(f"s_lshl_b32 {oL}, {sw}, 13")

    def tr_setup():
        e(f"v_bfe_u32 {tra}, {lane}, 2, 2")
        e(f"v_lshrrev_b32 {t0}, 5, {lane}")
        e(f"v_lshl_add_u32 {tra}, {t0}, 3, {tra}")
        e(f"v_lshlrev_b32 {tra}, 8, {tra}")
        e(f"v_bfe_u32 {t0}, {lane}, 4, 1")
        e(f"v_lshl_add_u32 {tra}, {t0}, 5, {tra}")
        e(f"v_and_b32 {t0}, 1, {lane}")
        e(f"v_lshl_add_u32 {tra}, {t0}, {3 if role in 'VO' else 4}, {tra}")
        e(f"v_bfe_u32 {t0}, {lane}, 1, 1")
        e(f"v_lshl_add_u32 {tra}, {t0}, {4 if role in 'VO' else 3}, {tra}")
        if isO:
            e(f"s_lshr_b32 {a2}, {sj}, 3")
            e(f"s_lshl_b32 {a2}, {a2}, 4")
            e(f"v_xor_b32 {tra}, {a2}, {tra}")
        e(f"s_lshl_b32 {a2}, {sw}, 6")
        e(f"v_add_u32 {tra}, {a2}, {tra}")

    def stage(n):
        for i in range(8):
            e(f"s_add_u32 m0, {oL}, {32768 * (n & 1) + 1024 * i}")
            e(f"s_add_u32 {a2}, {oX}, {(128 * n + 4 * i) << pitch}")
            vm.op(f"w{n}", f"buffer_load_dwordx4 {wa}, {tsrd}, {a2} offen {p.wflag[role]} lds")

    def service(n):
        vm.wait(f"w{n}")
        e("s_barrier")
        for k in range(8):
            for hf in range(2):
                off = 32768 * (n & 1) + (16 * k + 4 * hf) * 256
                e(f"ds_read_b64_tr_b16 {W.sub(4 * (8 * n + k) + 2 * hf, 2)}, {tra} offset:{off}")
            if k % 4 == 3:
                e("s_waitcnt lgkmcnt(0)")
        if n < 6:
            e("s_barrier")
            stage(n + 2)

    def hook(n):
        if n == 0:
            setup()
            stage(0)
            consts()
            tr_setup()
            vm.op("f", f"buffer_store_dword {fval}, {fad}, {ws}, 0 offen sc1")
            if not isO:
                vm.op("f", f"buffer_store_dword {fval}, {osta}, {ws}, 0 offen sc1")
            stage(1)
            if isO and p.warm_x:
                e(f"s_load_dwordx2 {src[0:2]}, s[0:1], 0")
                e(f"s_mov_b32 {src[2]}, {4 << 20}")
                e(f"s_mov_b32 {src[3]}, 0x20000")
                e(f"v_lshlrev_b32 {t1}, 7, {tid}")
                e(f"s_lshl_b32 {oY}, {sj}, 15")
        elif n <= 8:
            service(n - 1)
            if isO and p.warm_x and n in (1, 3, 5, 7):
                vm.op("x", f"buffer_load_dword {osta}, {t1}, {src}, {oY} offen")
                e(f"s_add_u32 {oY}, {oY}, {1 << 20}")
            if n == 3:
                S["signal_ready"](e, G[170:174], vm)

    partb.emit_rest(e, S, tag + "b", vm, hook)
    e("s_barrier")
    S["wait_ready"](e, G[4:8])
    if p.dbg == "pro":
        e(f"s_branch {dead}")

    if isO:
        e(f"s_load_dwordx2 {tsrd[0:2]}, s[0:1], 128")
        e(f"s_mov_b32 {tsrd[2]}, {8 << 20}")
        e(f"s_mov_b32 {tsrd[3]}, 0x20000")
        for i in range(4):
            e(f"s_mov_b32 {src[i]}, {ws[i]}")
        e(f"s_lshr_b32 {a0}, {sj}, 3")
        e(f"s_lshl_b32 {a0}, {a0}, 2")
        e(f"s_add_u32 {a0}, {a0}, {sw}")
        e(f"s_lshl_b32 {oX}, {a0}, 14")
        e(f"s_add_u32 {oX}, {oX}, {LY.OX}")
        e(f"s_lshl_b32 {oF}, {a0}, 3")
        e(f"s_add_u32 {oF}, {oF}, {LY.FO}")
        e(f"s_lshl_b32 {oL}, {sw}, 14")
        XSTEP = 0x40000
    else:
        e(f"s_load_dwordx2 {src[0:2]}, s[0:1], 0")
        e(f"s_mov_b32 {src[2]}, {4 << 20}")
        e(f"s_mov_b32 {src[3]}, 0x20000")
        e(f"s_lshl_b32 {oX}, {sw}, 14")
        e(f"s_mul_i32 {oL}, {sw}, {8 * 2064}")
        e(f"s_lshl_b32 {a0}, {sj}, 2")
        e(f"s_add_u32 {a0}, {a0}, {sw}")
        e(f"s_lshl_b32 {oY}, {a0}, 11")
        e(f"s_add_u32 {oY}, {oY}, {dict(K=LY.KX, V=LY.VX, Q=LY.QX)[role]}")
        XSTEP = 0x10000
    e("s_waitcnt lgkmcnt(0)")
    ld_flag = "sc1 " if isO else ""

    def dma_ops(buf, base):
        ops = []
        if isO:
            for i in range(4):
                for q in range(4):
                    g = []
                    if q == 0:
                        g += [f"s_add_u32 m0, {oL}, {buf * BUF + 4096 * i}", f"s_add_u32 {a2}, {base}, {4096 * i}"]
                    g.append(f"buffer_load_dwordx4 {l16}, {src}, {a2} offen offset:{1024 * q} {ld_flag}lds")
                    ops.append(g)
        else:
            for r in range(8):
                for q in range(2):
                    g = []
                    if q == 0:
                        g += [f"s_add_u32 m0, {oL}, {buf * BUF + 2064 * r}", f"s_add_u32 {a2}, {base}, {2048 * r}"]
                    g.append(f"buffer_load_dwordx4 {l16}, {src}, {a2} offen offset:{1024 * q} lds")
                    ops.append(g)
        return ops

    kstep = 1024 if isO else 32

    def rd(buf, k):
        return f"ds_read_b128 {ring.sub(4 * (k % 8), 4)}, {xr[buf]} offset:{kstep * k}"

    def segment(buf, extra, boundary):
        a = acc[buf]
        for k in range(64):
            if k < 58:
                e("s_waitcnt lgkmcnt(5)")
            elif k < 60:
                e(f"s_waitcnt lgkmcnt({63 - k})")
            f, w_ = ring.sub(4 * (k % 8), 4), W.sub(4 * k, 4)
            A, B = (f, w_) if role == "V" else (w_, f)
            if "m16" in p.dbg:
                for t in range(2):
                    d = a.sub(8 * (k & 1) + 4 * t, 4)
                    w_ = W.sub(8 * (k >> 1) + 4 * t, 4)
                    A, B = (f, w_) if role == "V" else (w_, f)
                    e(f"v_mfma_f32_16x16x32_bf16 {d}, {A}, {B}, {0 if k < 2 else d}")
            else:
                e(f"{M32} {a}, {A}, {B}, {0 if k == 0 else a}")
            if k < 58 and not ("half" in p.dbg and k & 1) and "nord" not in p.dbg:
                e(rd(buf, k + 6))
            for x in extra.get(k, []):
                x() if callable(x) else e(x)
            if k == 59:
                e("s_waitcnt lgkmcnt(0)")
                boundary()
                e("s_barrier")
            if 59 <= k <= 61:
                e(rd(buf ^ 1, 2 * (k - 59)))
                e(rd(buf ^ 1, 2 * (k - 59) + 1))

    def add(extra, k, ops):
        extra.setdefault(k, []).extend(ops)

    def spread_dma(extra, buf, base):
        for i, g in enumerate(dma_ops(buf, base)):
            add(extra, 2 * i, g)

    def pack_ops(a):
        return [f"v_cvt_pk_bf16_f32 {pk[i]}, {a[2 * i]}, {a[2 * i + 1]}" for i in range(8)]

    def y_stores():
        f = " sc1"
        return [f"buffer_store_dwordx4 {pk[0:4]}, {l16}, {ws}, {oY} offen{f}",
                f"buffer_store_dwordx4 {pk[4:8]}, {l16}, {ws}, {oY} offen offset:1024{f}",
                f"s_add_u32 {oY}, {oY}, 0x40000"]

    word = f"buffer_store_dword {fval}, {fad}, {ws}, 0 offen sc1"

    def wait_words(name, load, regs, need):
        e.label(L(name))
        e(f"s_min_u32 {a0}, {regs[0]}, {regs[1]}")
        for r in regs[2:]:
            e(f"s_min_u32 {a0}, {a0}, {r}")
        e(f"s_cmp_gt_u32 {a0}, {need}")
        e(f"s_cbranch_scc1 {L(name + 'ok')}")
        e(load)
        spin_check()
        e("s_waitcnt lgkmcnt(0)")
        e(f"s_branch {L(name)}")
        e.label(L(name + "ok"))

    wad = G[175]
    vload = f"buffer_load_dword {vw}, {wad}, {ws}, {oF} offen sc1"

    def vtest(need, mask):
        return [f"v_cmp_ge_u32 vcc, {need}, {vw}", f"s_and_b32 vcc_lo, vcc_lo, {mask:#x}"]

    def wait_vwords(name, need, mask):
        e.label(L(name))
        for x in vtest(need, mask):
            e(x)
        e(f"s_cbranch_scc0 {L(name + 'ok')}")
        e(vload)
        spin_check()
        e("s_waitcnt vmcnt(0)")
        e(f"s_branch {L(name)}")
        e.label(L(name + "ok"))

    e(f"v_mov_b32 {vw}, 0")
    e(f"v_and_b32 {wad}, {1 if isO else 15}, {lane}")
    e(f"v_lshlrev_b32 {wad}, 2, {wad}")
    for i in range(16):
        e(f"s_mov_b32 {fl[i]}, 0")
    e(f"s_mov_b32 {seg}, 0")

    def first_fill():
        for g in dma_ops(0, oX):
            for x in g:
                e(x)
        e("s_waitcnt vmcnt(0)")
        e("s_barrier")
        for k in range(6):
            e(rd(0, k))

    if not isO:
        first_fill()
        e(f"s_add_u32 {oY}, {oY}, {0x40000000 - 0x40000}")
        att = make_attention(e, S, locals())
        e.label(L("loop"))
        for u in range(2):
            buf = u & 1
            extra = {}
            add(extra, 0, [f"s_add_u32 {oX}, {oX}, {XSTEP}"])
            spread_dma(extra, buf ^ 1, oX)
            ops = pack_ops(acc[buf ^ 1])
            for i in range(4):
                add(extra, 4 + i, ops[2 * i:2 * i + 2])
            ys = y_stores()
            add(extra, 9, [ys[0]])
            add(extra, 11, ys[1:] + [f"s_bitset0_b32 {oY}, 30"])
            add(extra, 25, ["s_waitcnt vmcnt(15)"] + att["word"])
            add(extra, 37, [f"v_mov_b32 {fval}, {seg}", "s_waitcnt vmcnt(11)", vload, word])
            add(extra, 57, [f"s_add_u32 {seg}, {seg}, 1", f"s_mov_b32 {ret}, {u}"])
            add(extra, 62, vtest(pre, 0xffff)[:1])
            add(extra, 63, vtest(pre, 0xffff)[1:])
            segment(buf, extra, lambda: e("s_waitcnt vmcnt(2)"))
            e(f"s_cbranch_scc0 {L('att')}")
            e.label(L(f"ret{u}"))
        e(f"s_cmp_lt_u32 {seg}, 64")
        e(f"s_cbranch_scc1 {L('loop')}")
        e.nop(12)
        for x in pack_ops(acc[1]) + y_stores():
            e(x)
        e(f"v_mov_b32 {fval}, 64")
        e(f"s_mov_b32 {ret}, 2")
        e.label(L("ret2"))
        e("s_waitcnt vmcnt(0) lgkmcnt(0)")
        e(word)
        for x in att["word"]:
            e(x)
        e(f"s_cmp_ge_u32 {pre}, 64")
        e(f"s_cbranch_scc1 {L('end')}")
        e.label(L("att"))
        att["run"]()
        e(f"s_cmp_eq_u32 {ret}, 0")
        e(f"s_cbranch_scc1 {L('ret0')}")
        e(f"s_cmp_eq_u32 {ret}, 1")
        e(f"s_cbranch_scc1 {L('ret1')}")
        e(f"s_branch {L('ret2')}")
        e.label(L("end"))
    else:
        emit_o_main(e, S, locals())
    e("s_waitcnt vmcnt(0) lgkmcnt(0)")
    e("s_barrier")
    e(f"s_branch {dead}")


def make_attention(e, S, c):
    G, acc, ws, l16, fsw, lane, oob = (c[n] for n in "G acc ws l16 fsw lane oob".split())
    kma, vma, t0, t1, t2, fval = (c[n] for n in "kma vma t0 t1 t2 fval".split())
    a0, a1, a2, pre, fl, oF, oS = (c[n] for n in "a0 a1 a2 pre fl oF oS".split())
    sj, sw = S["j"], S["w"]
    Kf, KM, Qf, Vf, VM, Sx, bias = G[0:32], G[32:64], G[64:96], G[96:128], G[128:136], G[136:152], G[152:168]
    cc, sm, ov = G[168:170], G[170:172], G[172]
    Sm = Kf[0:16]
    hd, go, oW, osta = (c[n] for n in "hd go oW osta".split())
    O = [G.sub(16 * t, 16) for t in range(4)]
    Pk = Qf[0:10]
    e(f"v_and_b32 {t0}, 31, {lane}")
    e(f"v_lshrrev_b32 {t1}, 5, {lane}")
    e(f"v_lshlrev_b32 {kma}, 4, {t0}")
    e(f"v_lshl_add_u32 {kma}, {t1}, 7, {kma}")
    e(f"v_cmp_gt_u32 vcc, 8, {t0}")
    e(f"v_and_b32 {vma}, 15, {t2}")
    e(f"v_lshlrev_b32 {vma}, 2, {vma}")
    e(f"v_lshl_add_u32 {vma}, {t1}, 7, {vma}")
    e(f"v_lshrrev_b32 {t2}, 4, {t2}")
    e(f"v_lshl_add_u32 {vma}, {t2}, 8, {vma}")
    e(f"v_cndmask_b32 {kma}, {oob}, {kma}, vcc")
    e(f"v_lshlrev_b32 {t1}, 3, {t1}")
    e(f"v_sub_u32 {t0}, {t0}, {t1}")
    e(f"v_mov_b32 {t1}, 0xf149f2ca")
    for r in range(16):
        key = 16 * (r >> 3) + 4 * ((r >> 2) & 1) + (r & 3)
        e(f"v_cmp_gt_i32 vcc, {key}, {t0}")
        e.nop(2)
        e(f"v_cndmask_b32 {bias[r]}, 0, {t1}, vcc")
    e(f"v_mov_b32 {cc[0]}, {SCALE_LOG2E:#x}")
    e(f"s_lshl_b32 {oF}, {hd}, 7")
    e(f"s_add_u32 {oF}, {oF}, {LY.FK}")
    e(f"s_mov_b32 {oW}, 0x40000000")
    e(f"v_cmp_eq_u32 vcc, 0, {lane}")
    e(f"v_mov_b32 {ov}, 0")
    e("s_nop 0")
    e(f"v_cndmask_b32 {osta}, {oob}, 0, vcc")
    oword = [f"buffer_store_dword {ov}, {osta}, {ws}, {oW} offen sc1", f"s_mov_b32 {oW}, 0x40000000"]

    def base():
        e(f"s_lshl_b32 {a1}, {pre}, 5")
        e(f"s_add_u32 {a1}, {a1}, {hd}")
        e(f"s_lshl_b32 {oS}, {a1}, 13")
        e(f"s_lshl_b32 {oW}, {a1}, 2")
        e(f"s_add_u32 {oW}, {oW}, {LY.FO}")

    def loads_x():
        out = []
        for dstr, b_, addr in ((Kf, LY.KX, fsw), (Qf, LY.QX, l16), (Vf, LY.VX, fsw)):
            for hf in range(2):
                for q in range(4):
                    g = [f"s_add_u32 {a2}, {oS}, {b_ + 4096 * hf}"] if q == 0 else []
                    out.append(g + [f"buffer_load_dwordx4 {dstr.sub(16 * hf + 4 * q, 4)}, {addr}, {ws}, {a2} offen offset:{1024 * q} sc1"])
        return out

    def loads_m():
        out = []
        for k in range(8):
            g = [f"s_lshr_b32 {a1}, {oS}, 2", f"s_add_u32 {a2}, {a1}, {LY.KM}"] if k == 0 else []
            out.append(g + [f"buffer_load_dwordx4 {KM.sub(4 * k, 4)}, {kma}, {ws}, {a2} offen offset:{256 * k} sc1"])
        for k in range(8):
            g = [f"s_add_u32 {a2}, {a1}, {LY.VM}"] if k == 0 else []
            out.append(g + [f"buffer_load_dword {VM[k]}, {vma}, {ws}, {a2} offen offset:{512 * (k >> 1) + 64 * (k & 1)} sc1"])
        return out

    def blocking():
        c["wait_vwords"]("bkv", pre, 0xf0ff)
        base()
        for g in loads_x():
            for x in g:
                e(x)
        c["wait_vwords"]("bm", pre, 0x0f00)
        for g in loads_m():
            for x in g:
                e(x)
        compute()

    def compute():
        e("s_waitcnt vmcnt(24)")
        for k in range(8):
            e(f"{M32} {Sx}, {Kf.sub(4 * k, 4)}, {Qf.sub(4 * k, 4)}, {bias if k == 0 else Sx}")
        e("s_waitcnt vmcnt(8)")
        for k in range(8):
            e(f"{M32} {Sm}, {KM.sub(4 * k, 4)}, {Qf.sub(4 * k, 4)}, {0 if k == 0 else Sm}")
        e.nop(4)
        e(f"v_max3_f32 {t0}, {Sx[0]}, {Sx[1]}, {Sx[2]}")
        for i in range(3, 15, 2):
            e(f"v_max3_f32 {t0}, {t0}, {Sx[i]}, {Sx[i + 1]}")
        e(f"v_max_f32 {t0}, {t0}, {Sx[15]}")
        e(f"v_max3_f32 {t0}, {t0}, {Sm[0]}, {Sm[1]}")
        e(f"v_max3_f32 {t0}, {t0}, {Sm[2]}, {Sm[3]}")
        e(f"v_mov_b32 {t1}, {t0}")
        e.nop(2)
        e(f"v_permlane32_swap_b32 {t0}, {t1}")
        e.nop(1)
        e(f"v_max_f32 {t0}, {t0}, {t1}")
        e(f"v_mul_f32 {t0}, {cc[0]}, {t0}")
        vals = [Sx[i] for i in range(16)] + [Sm[i] for i in range(4)]
        pairs = [Sx.sub(2 * i, 2) for i in range(8)] + [Sm.sub(2 * i, 2) for i in range(2)]
        for r in vals:
            e(f"v_fma_f32 {r}, {r}, {cc[0]}, -{t0}")
        for r in vals:
            e(f"v_exp_f32 {r}, {r}")
        e(f"v_pk_add_f32 {sm}, {pairs[0]}, {pairs[1]}")
        for pr in pairs[2:]:
            e(f"v_pk_add_f32 {sm}, {sm}, {pr}")
        e(f"v_add_f32 {t0}, {sm[0]}, {sm[1]}")
        e(f"v_add_f32 {t1}, {sm[0]}, {sm[1]}")
        e.nop(2)
        e(f"v_permlane32_swap_b32 {t0}, {t1}")
        e.nop(1)
        e(f"v_add_f32 {t0}, {t0}, {t1}")
        e(f"v_rcp_f32 {sm[0]}, {t0}")
        e.nop(1)
        for pr in pairs:
            e(f"v_pk_mul_f32 {pr}, {pr}, {sm} op_sel_hi:[1,0]")
        for i, pr in enumerate(pairs):
            e(f"v_cvt_pk_bf16_f32 {Pk[i]}, {pr[0]}, {pr[1]}")
        e("s_waitcnt vmcnt(0)")
        e(f"s_add_u32 {a2}, {oS}, {LY.OX}")
        e(f"s_add_u32 {a1}, {a2}, 4096")
        for t in range(4):
            e(f"{M32} {O[t]}, {Vf.sub(8 * t, 4)}, {Pk[0:4]}, 0")
            e(f"{M32} {O[t]}, {Vf.sub(8 * t + 4, 4)}, {Pk[4:8]}, {O[t]}")
            e(f"{M8} {O[t]}, {VM.sub(2 * t, 2)}, {Pk[8:10]}, {O[t]}")
        e.nop(3)
        for t in range(4):
            d = Vf.sub(8 * t, 8)
            for i in range(8):
                e(f"v_cvt_pk_bf16_f32 {d[i]}, {O[t][2 * i]}, {O[t][2 * i + 1]}")
            for q in range(2):
                e(f"buffer_store_dwordx4 {d.sub(4 * q, 4)}, {l16}, {ws}, {a2 if t < 2 else a1} offen offset:{2048 * (t & 1) + 1024 * q} sc1")
        e(f"s_add_u32 {a0}, {pre}, 1")
        e(f"v_mov_b32 {ov}, {a0}")
        e(f"s_add_u32 {pre}, {pre}, 12")
    return dict(run=blocking, word=oword)


def emit_o_main(e, S, c):
    G, acc, ws, tsrd, l16, lane = (c[n] for n in "G acc ws tsrd l16 lane".split())
    t0, t1, osta, fval, pk = (c[n] for n in "t0 t1 osta fval pk".split())
    seg, a0, a1, oX, oY, oF, oS, pre, fl = (c[n] for n in "seg a0 a1 oX oY oF oS pre fl".split())
    L, add, segment, dma_ops, wait_words, word = (c[n] for n in "L add segment dma_ops wait_words word".split())
    oD, need, oR, oOut = (c[n] for n in "hd go oW ret".split())
    sj, sw = S["j"], S["w"]
    hold, PR = [G[8:12], G[12:16]], G[16:28]
    fo, fp, oT = fl[0:2], fl[4:8], fl[8:11]
    load_o, vtest, wait_vwords = c["vload"], c["vtest"], c["wait_vwords"]
    load_p = f"s_load_dwordx4 {fp}, {ws[0:2]}, {oS} glc"
    FAR = 0x40000000
    e(f"s_and_b32 {a0}, {sj}, 7")
    e(f"s_lshl_b32 {a0}, {a0}, 2")
    e(f"s_add_u32 {a0}, {a0}, {sw}")
    e(f"s_lshl_b32 {oY}, {a0}, 14")
    e(f"s_lshl_b32 {oOut}, {a0}, 6")
    e(f"s_lshr_b32 {a0}, {sj}, 3")
    for i in range(1, 4):
        e(f"s_xor_b32 {a1}, {a0}, {i}")
        e(f"s_lshl_b32 {a1}, {a1}, 12")
        e(f"s_add_u32 {a1}, {a1}, {oY}")
        e(f"s_add_u32 {oT[i - 1]}, {a1}, {LY.PART + 1024 * i + FAR - (1 << 19)}")
    e(f"s_lshl_b32 {a1}, {a0}, 12")
    e(f"s_add_u32 {a1}, {a1}, {oY}")
    e(f"s_add_u32 {oR}, {a1}, {LY.PART - (2 << 19)}")
    e(f"s_lshl_b32 {a1}, {a0}, 4")
    e(f"s_add_u32 {oOut}, {oOut}, {a1}")
    e(f"s_add_u32 {oOut}, {oOut}, {FAR - (3 << 17)}")
    e(f"v_and_b32 {t0}, 31, {lane}")
    e(f"v_lshrrev_b32 {t1}, 5, {lane}")
    e(f"v_lshlrev_b32 {osta}, 12, {t0}")
    e(f"v_lshl_add_u32 {osta}, {t1}, 3, {osta}")

    def send(a, i):
        return [f"buffer_store_dwordx4 {a.sub(4 * i, 4)}, {l16}, {ws}, {oT[i - 1]} offen sc1",
                f"s_add_u32 {oT[i - 1]}, {oT[i - 1]}, {1 << 19}", f"s_bitset0_b32 {oT[i - 1]}, 30"]

    def keep(a, h):
        return [f"v_mov_b32 {h[i]}, {a[i]}" for i in range(4)]

    def fetch():
        return [f"buffer_load_dwordx4 {PR.sub(4 * i, 4)}, {l16}, {ws}, {oR} offen offset:{1024 * (i + 1)} sc1"
                for i in range(3)] + [f"s_add_u32 {oR}, {oR}, {1 << 19}"]

    def finish(h):
        ops = []
        for i in range(3):
            for q in range(2):
                ops.append(f"v_pk_add_f32 {h.sub(2 * q, 2)}, {h.sub(2 * q, 2)}, {PR.sub(4 * i + 2 * q, 2)}")
        ops += [f"v_cvt_pk_bf16_f32 {pk[q]}, {h[2 * q]}, {h[2 * q + 1]}" for q in range(2)]
        ops += [f"buffer_store_dwordx2 {pk[0:2]}, {osta}, {tsrd}, {oOut} offen",
                f"s_add_u32 {oOut}, {oOut}, {1 << 17}", f"s_bitset0_b32 {oOut}, 30"]
        return ops

    def peers(name, back):
        e(f"s_sub_u32 {need}, {seg}, {back - 2}")
        wait_words(name, load_p, [fp[i] for i in range(4)], need)

    wait_vwords("first", 0, 3)
    e(f"s_add_u32 {oF}, {oF}, 128")
    e(load_o)
    c["first_fill"]()
    e.label(L("loop"))
    for u in range(2):
        buf = u
        extra = {}
        add(extra, 0, [f"s_add_u32 {oX}, {oX}, 0x40000", f"s_add_u32 {a1}, {seg}, 1"] + vtest(a1, 3)[:1])
        add(extra, 1, vtest(a1, 3)[1:] + [f"s_cselect_b32 {pre}, 0, 1", f"s_cselect_b32 {oD}, {FAR}, {oX}"])
        slots = [2 + 5 * i // 2 for i in range(16)]
        for k, g in zip(slots, dma_ops(buf ^ 1, oD)):
            add(extra, k, g)
        for i in range(1, 4):
            add(extra, 1 + 5 * i, send(acc[buf ^ 1], i))
        fin = finish(hold[buf ^ 1])
        before = lambda k: sum(x <= k for x in slots) + sum(1 + 5 * i <= k for i in range(1, 4))
        add(extra, 18, [f"s_waitcnt vmcnt({before(18)})"] + fin[0:3])
        add(extra, 20, fin[3:6])
        add(extra, 21, fin[6:8])
        add(extra, 23, fin[8:])
        add(extra, 25, keep(acc[buf ^ 1], hold[buf ^ 1]))
        add(extra, 26, [load_p])
        add(extra, 40, [f"s_lshl_b32 {a0}, {pre}, 7", f"s_add_u32 {oF}, {oF}, {a0}", load_o])
        add(extra, 42, [f"s_add_u32 {a0}, {seg}, 2", f"v_mov_b32 {fval}, {a0}", f"s_waitcnt vmcnt({16 - before(16) + 3 + 2})", word])
        add(extra, 50, [lambda u=u: peers(f"p{u}", 2)] + fetch())

        def boundary(u=u, buf=buf):
            e(f"s_add_u32 {seg}, {seg}, 1")
            e(f"s_cmp_eq_u32 {seg}, 64")
            e(f"s_cselect_b32 {pre}, 1, {pre}")
            e(f"s_cmp_eq_u32 {pre}, 1")
            e(f"s_cbranch_scc1 {L(f'pre{u}')}")
            wait_vwords(f"o{u}", seg, 3)
            for g in dma_ops(buf ^ 1, oX):
                for x in g:
                    e(x)
            e(f"s_add_u32 {oF}, {oF}, 128")
            e(load_o)
            e("s_waitcnt vmcnt(0)")
            e.label(L(f"pre{u}"))
            e("s_waitcnt vmcnt(5)")
        segment(buf, extra, boundary)
    e(f"s_cmp_lt_u32 {seg}, 64")
    e(f"s_cbranch_scc1 {L('loop')}")
    e.nop(10)
    for i in range(1, 4):
        for x in send(acc[1], i):
            e(x)
    e("s_waitcnt vmcnt(3)")
    for x in finish(hold[1]) + keep(acc[1], hold[1]):
        e(x)
    e("s_waitcnt lgkmcnt(0)")
    peers("t2", 2)
    for x in fetch():
        e(x)
    e(f"v_mov_b32 {fval}, 66")
    e("s_waitcnt vmcnt(4)")
    e(word)
    e("s_waitcnt vmcnt(1)")
    for x in finish(hold[0]):
        e(x)
    e(f"s_add_u32 {seg}, {seg}, 1")
    peers("t1", 2)
    for x in fetch():
        e(x)
    e("s_waitcnt vmcnt(0)")
    for x in finish(hold[1]):
        e(x)
```

```python
import os, sys
from emit import Emit, Regs, R
import layout as LY
import chain
import proj
import partb

NAME = "concat_heads__memory_aug_recurrent_mem_tr__ssm_conv_s4__prompt"
LDS = 153600
READY = 224
READY_SAFE = 240


def build(p, par=None, roles="CKVQO"):
    nready = 128 * ("C" in roles) + 32 * sum(r in roles for r in "KVQO")
    e = Emit()
    s = Regs("s", 4, 102)
    S = {"alloc": s}
    S["ws"] = ws = s.alloc("ws", 4, 4)
    S["tsrd"] = s.alloc("tsrd", 4, 4)
    S["dbg"] = dbg = s.alloc("dbg", 4, 4)
    S["wptr"] = s.alloc("wptr", 8, 4)
    S["x"], S["j"], S["w"], S["par"], S["cu"], safe, rdy = (s.alloc(n) for n in "x j w par cu safe rdy".split())
    tm = s.alloc("tm", 3) if p.times else None
    tmp = s.alloc("tmp", 2, 2)
    vote = s.alloc("vote", 2, 2)
    S["exit"] = "L_done"
    S["calibrate"] = par is None
    S["prof"] = p.dbg == "pro"
    TK = LDS - 64

    e("s_cmp_ge_u32 s2, 256")
    e("s_cbranch_scc1 L_exit")
    if p.times:
        e(f"s_memrealtime {vote}")
    e(f"s_load_dwordx2 {ws[0:2]}, s[0:1], 144")
    e(f"s_load_dwordx2 {dbg[0:2]}, s[0:1], 136")
    e(f"s_load_dwordx8 {S['wptr']}, s[0:1], 16")
    partb.emit_pointers(e)
    e(f"s_getreg_b32 {S['x']}, hwreg(HW_REG_XCC_ID, 0, 4)")
    e("v_lshrrev_b32 v1, 6, v0")
    e(f"s_mov_b32 {ws[2]}, {LY.WS_RECORDS:#x}")
    e(f"s_mov_b32 {ws[3]}, 0x20000")
    e(f"v_readfirstlane_b32 {S['w']}, v1")
    e(f"s_mov_b32 {dbg[2]}, 256")
    e(f"s_mov_b32 {dbg[3]}, 0x20000")
    e(f"s_mov_b32 {S['par']}, {0 if par is None else (0xaa if par == 0 else 0x55)}")
    e(f"s_mov_b32 {safe}, 0")
    e(f"s_mov_b32 {rdy}, {READY}")
    e(f"s_and_b32 {tmp[0]}, s2, 7")
    e(f"s_lshl_b32 {tmp[0]}, {tmp[0]}, 5")
    e(f"s_lshr_b32 {S['cu']}, s2, 3")
    e(f"s_add_u32 {S['cu']}, {S['cu']}, {tmp[0]}")
    e("s_waitcnt lgkmcnt(0)")
    if p.times:
        e(f"s_mov_b32 {tm[0]}, {vote[0]}")
    e(f"s_add_u32 {ws[0]}, {ws[0]}, 0x1fffff")
    e(f"s_addc_u32 {ws[1]}, {ws[1]}, 0")
    e(f"s_and_b32 {ws[0]}, {ws[0]}, 0xffe00000")
    e(f"v_mov_b32 v2, {TK}")
    e(f"s_mov_b64 {vote}, 1")
    e(f"s_cmp_lg_u32 {S['w']}, 0")
    e("s_cbranch_scc1 L_start")
    e(f"s_and_b32 {tmp[0]}, {S['x']}, 3")
    e(f"s_lshl_b32 {tmp[0]}, {tmp[0]}, 6")
    e(f"s_and_b32 {tmp[1]}, {S['x']}, 12")
    e(f"s_add_u32 {tmp[0]}, {tmp[0]}, {tmp[1]}")
    e(f"v_mov_b32 v3, {tmp[0]}")
    e("v_mov_b32 v4, 1")
    e("s_mov_b64 exec, 1")
    e(f"buffer_atomic_add v4, v3, {dbg}, 0 offen sc0 sc1")
    e("s_mov_b64 exec, -1")
    e.label("L_start")
    partb.emit_loads(e, S)
    e(f"s_cmp_eq_u32 {safe}, 1")
    e("s_cbranch_scc1 L_dispatch")
    e(f"s_cmp_lg_u32 {S['w']}, 0")
    e("s_cbranch_scc1 L_notfirst")
    e(f"s_waitcnt vmcnt({len(partb.LOAD_TAGS)})")
    e("s_mov_b64 exec, 1")
    e("ds_write_b32 v2, v4")
    e("s_mov_b64 exec, -1")
    e.label("L_notfirst")
    e("s_waitcnt lgkmcnt(0)")
    e("s_barrier")
    e("ds_read_b32 v4, v2")
    e("s_waitcnt lgkmcnt(0)")
    e(f"v_readfirstlane_b32 {S['j']}, v4")

    def cast_vote(e, c):
        if par is not None:
            return
        l = e.new_label('voted')
        e(f"s_cmp_lg_u32 {S['w']}, 1")
        e(f"s_cbranch_scc1 {l}")
        e(f"s_bfe_u32 {c[7]}, s2, 0x30003")
        e(f"s_lshl_b32 {c[0]}, {c[7]}, 21")
        e(f"s_lshr_b32 {c[1]}, s2, 6")
        e(f"s_lshl_b32 {c[1]}, {c[1]}, 3")
        e(f"s_and_b32 {c[2]}, s2, 7")
        e(f"s_add_u32 {c[1]}, {c[1]}, {c[2]}")
        e(f"s_lshl_b32 {c[1]}, {c[1]}, 8")
        e(f"s_add_u32 {c[0]}, {c[0]}, {c[1]}")
        e(f"s_add_u32 {c[0]}, {c[0]}, {LY.RING_C + (6 << 18)}")
        e(f"s_add_u32 {c[1]}, {c[0]}, 8192")
        e(f"s_load_dword {c[6]}, {ws[0:2]}, {c[0]} glc")
        e(f"s_load_dword {c[6]}, {ws[0:2]}, {c[1]} glc")
        e("s_waitcnt lgkmcnt(0)")
        e(f"s_memtime {c[2:4]}")
        e(f"s_load_dword {c[6]}, {ws[0:2]}, {c[0]} glc")
        e("s_waitcnt lgkmcnt(0)")
        e(f"s_memtime {c[4:6]}")
        e(f"s_load_dword {c[6]}, {ws[0:2]}, {c[1]} glc")
        e("s_waitcnt lgkmcnt(0)")
        e(f"s_memtime {tmp}")
        e(f"s_sub_u32 {c[2]}, {c[4]}, {c[2]}")
        e("s_waitcnt lgkmcnt(0)")
        e(f"s_sub_u32 {c[4]}, {tmp[0]}, {c[4]}")
        e(f"s_cmp_lt_u32 {c[4]}, {c[2]}")
        e(f"s_cselect_b32 {c[2]}, 1, 0")
        e(f"s_bfe_u32 {c[3]}, {S['x']}, 0x10002")
        e(f"s_xor_b32 {c[2]}, {c[2]}, {c[3]}")
        e(f"s_mov_b32 {c[3]}, 0")
        e(f"s_mul_i32 {c[7]}, {c[7]}, 6")
        e(f"s_add_u32 {c[7]}, {c[7]}, 16")
        e(f"s_lshl_b64 {vote}, {c[2:4]}, {c[7]}")
        e(f"s_or_b32 {vote[0]}, {vote[0]}, 1")
        e.label(l)

    S["vote"] = cast_vote

    def arrive(e, vq, vm=None):
        e(f"v_mov_b32 {vq[0]}, {vote[0]}")
        e(f"v_mov_b32 {vq[1]}, {vote[1]}")
        e(f"v_bfrev_b32 {vq[2]}, 1")
        e(f"v_cmp_eq_u32 vcc, 64, v0")
        e.nop(2)
        e(f"v_cndmask_b32 {vq[2]}, {vq[2]}, 0, vcc")
        op = f"buffer_atomic_add_x2 {vq[0:2]}, {vq[2]}, {dbg}, {rdy} offen sc1"
        vm.op("sig", op) if vm else e(op)

    def wait_ready(e, vq, need_par=False):
        l = e.new_label("rdy")
        e(f"s_mov_b32 s3, 0")
        e.label(l)
        e(f"buffer_load_dwordx4 {vq}, off, {dbg}, {rdy} sc1")
        e(f"s_add_u32 s3, s3, 1")
        e(f"s_cmp_gt_u32 s3, {chain.SPIN_MAX}")
        e("s_cbranch_scc1 L_exit")
        e("s_waitcnt vmcnt(0)")
        e(f"v_readfirstlane_b32 {tmp[0]}, {vq[0]}")
        e(f"v_readfirstlane_b32 {tmp[1]}, {vq[1]}")
        e(f"v_readfirstlane_b32 vcc_hi, {vq[2]}")
        e(f"s_and_b32 vcc_lo, {tmp[0]}, 0xffff")
        e(f"s_cmp_lt_u32 vcc_lo, {nready}")
        e(f"s_cbranch_scc1 {l}")
        e("s_cmp_lg_u32 vcc_hi, 0")
        e("s_cbranch_scc1 L_general")
        if need_par:
            e(f"s_mov_b32 s3, 0")
            for i in range(8):
                e(f"s_bfe_u64 vcc, {tmp}, {0x60000 + 16 + 6 * i:#x}")
                e(f"{'s_sub_i32' if i & 1 else 's_add_i32'} s3, s3, vcc_lo")
            e("s_cmp_gt_i32 s3, 0")
            e(f"s_cselect_b32 s3, {nready // 32}, {nready * 3 // 32}")
            for i in range(8):
                e(f"s_bfe_u64 vcc, {tmp}, {0x60000 + 16 + 6 * i:#x}")
                e("s_cmp_gt_u32 vcc_lo, s3")
                e(f"s_cselect_b32 vcc_lo, {1 << i}, 0")
                e(f"s_or_b32 {S['par']}, {S['par']}, vcc_lo")
                e(f"s_sub_u32 s3, {nready // 8}, s3")
        if p.times:
            e(f"s_memrealtime {tmp}")
            e(f"s_memtime vcc")
            e("s_waitcnt lgkmcnt(0)")
            e(f"s_mov_b32 {tm[1]}, {tmp[0]}")
            e(f"s_mov_b32 {tm[2]}, vcc_lo")

    S["signal_ready"] = arrive
    S["wait_ready"] = wait_ready

    e(f"s_cmp_ge_u32 {S['j']}, {0 if p.force_general == 2 else 32 - p.force_general}")
    e("s_cbranch_scc1 L_odd")
    e(f"s_cmp_lt_u32 {S['x']}, 8")
    e("s_cbranch_scc1 L_dispatch")
    e.label("L_odd")
    e("v_mov_b32 v4, 1")
    e(f"buffer_store_dword v4, off, {dbg}, {rdy} offset:8 sc1")
    e("s_waitcnt vmcnt(0)")
    arrive(e, R("v", 4, 4))
    wait_ready(e, R("v", 8, 4))
    e.label("L_general")
    e("s_waitcnt vmcnt(0) lgkmcnt(0)")
    e("s_barrier")
    e(f"s_mov_b32 {safe}, 1")
    e(f"s_mov_b32 {rdy}, {READY_SAFE}")
    e(f"s_mov_b32 {S['par']}, 0")
    e(f"s_lshr_b32 {S['x']}, s2, 5")
    e(f"s_and_b32 {S['j']}, s2, 31")
    e(f"s_add_u32 {ws[0]}, {ws[0]}, 0x200000")
    e(f"s_addc_u32 {ws[1]}, {ws[1]}, 0")
    partb.emit_pointers(e)
    e("s_waitcnt lgkmcnt(0)")
    e("s_branch L_start")
    e.label("L_dispatch")
    mark = s.next
    for i, r in enumerate(p.place):
        e(f"s_cmp_eq_u32 {S['x']}, {4 + i}")
        e(f"s_cbranch_scc1 {'L_role_' + r if r in roles else 'L_exit'}")
    if "C" in roles:
        e(f"s_cmp_eq_u32 {safe}, 1")
        e("s_cbranch_scc1 L_role_G")
        chain.emit_chain(e, S, p, "", "cf")
    e.label("L_done")
    if p.times:
        e(f"s_memrealtime {vote}")
        e(f"s_memtime vcc")
        e(f"s_lshl_b32 {tmp[0]}, {S['x']}, 5")
        e(f"s_add_u32 {tmp[0]}, {tmp[0]}, {S['j']}")
        e(f"s_lshl_b32 {tmp[0]}, {tmp[0]}, 2")
        e(f"s_add_u32 {tmp[0]}, {tmp[0]}, {S['w']}")
        e(f"s_lshl_b32 {tmp[0]}, {tmp[0]}, 4")
        e(f"s_add_u32 {tmp[0]}, {tmp[0]}, {LY.TIMES}")
        e("s_mov_b64 exec, -1")
        e("s_waitcnt lgkmcnt(0) vmcnt(0)")
        e("v_mov_b32 v1, 0")
        e(f"s_sub_u32 {tm[2]}, vcc_lo, {tm[2]}")
        for i, r in enumerate((tm[0], tm[1], vote[0], tm[2])):
            e(f"v_mov_b32 v{2 + i}, {r}")
        e(f"buffer_store_dwordx4 v[2:5], v1, {ws}, {tmp[0]} offen")
        if S["prof"]:
            e(f"s_sub_u32 {tmp[0]}, {tmp[0]}, {LY.TIMES}")
            e(f"s_lshl_b32 {tmp[0]}, {tmp[0]}, 4")
            e("v_and_b32 v1, 63, v0")
            e("v_lshlrev_b32 v1, 2, v1")
            e(f"buffer_store_dword v254, v1, {ws}, {tmp[0]} offen")
    e.label("L_exit")
    e("s_endpgm")
    for r in "KVQO":
        if r in roles:
            s.next = mark
            e.label("L_role_" + r)
            proj.emit_proj(e, S, p, r, "r" + r)
    if "C" in roles:
        s.next = mark
        e.label("L_role_G")
        chain.emit_chain(e, S, p, "sc1", "cg")

    head = open(os.path.join(os.path.dirname(os.path.abspath(__file__)), "..", NAME + ".s.ref")).read().split("; Override launch")[0]
    return f"""{head}; @launch grid=(256,1,1) block=(256,1,1) lds={LDS}
.amdgcn_target "amdgcn-amd-amdhsa--gfx950"
.text
.globl {NAME}_kernel
.p2align 8
.type {NAME}_kernel,@function
{NAME}_kernel:
{e.text()}
.section .rodata,"a"
.p2align 6
.amdhsa_kernel {NAME}_kernel
  .amdhsa_next_free_vgpr 512
  .amdhsa_next_free_sgpr 102
  .amdhsa_accum_offset 256
  .amdhsa_group_segment_fixed_size 0
  .amdhsa_kernarg_size 152
  .amdhsa_user_sgpr_count 2
  .amdhsa_user_sgpr_kernarg_segment_ptr 1
  .amdhsa_system_sgpr_workgroup_id_x 1
  .amdhsa_float_denorm_mode_32 3
.end_amdhsa_kernel
"""


if __name__ == "__main__":
    sys.stdout.write(build(chain.P()))
```

```python
import os, sys
from emit import Emit, Regs, R
import layout as LY
import chain
import proj
import partb

NAME = "concat_heads__memory_aug_recurrent_mem_tr__ssm_conv_s4__prompt"
LDS = 153600
READY = 32
READY_SAFE = 48


def build(p, par=None, roles="CKVQO"):
    nready = 128 * ("C" in roles) + 32 * sum(r in roles for r in "KVQO")
    e = Emit()
    s = Regs("s", 4, 102)
    S = {"alloc": s}
    S["ws"] = ws = s.alloc("ws", 4, 4)
    S["tsrd"] = s.alloc("tsrd", 4, 4)
    S["dbg"] = dbg = s.alloc("dbg", 4, 4)
    S["wptr"] = s.alloc("wptr", 8, 4)
    S["x"], S["j"], S["w"], S["par"], S["cu"], safe, rdy = (s.alloc(n) for n in "x j w par cu safe rdy".split())
    tm = s.alloc("tm", 3) if p.times else None
    tmp = s.alloc("tmp", 2, 2)
    vote = s.alloc("vote", 2, 2)
    S["exit"] = "L_done"
    S["calibrate"] = par is None
    S["prof"] = p.dbg == "pro"
    TK = LDS - 64

    def cast_vote(e, c):
        if par is not None:
            return
        l = e.new_label('voted')
        e(f"s_cmp_lg_u32 {S['w']}, 1")
        e(f"s_cbranch_scc1 {l}")
        e(f"s_bfe_u32 {c[7]}, s2, 0x30003")
        e(f"s_lshl_b32 {c[0]}, {c[7]}, 21")
        e(f"s_lshr_b32 {c[1]}, s2, 6")
        e(f"s_lshl_b32 {c[1]}, {c[1]}, 3")
        e(f"s_and_b32 {c[2]}, s2, 7")
        e(f"s_add_u32 {c[1]}, {c[1]}, {c[2]}")
        e(f"s_lshl_b32 {c[1]}, {c[1]}, 8")
        e(f"s_add_u32 {c[0]}, {c[0]}, {c[1]}")
        e(f"s_add_u32 {c[0]}, {c[0]}, {LY.RING_C + (6 << 18)}")
        e(f"s_add_u32 {c[1]}, {c[0]}, 8192")
        e(f"s_load_dword {c[6]}, {ws[0:2]}, {c[0]} glc")
        e(f"s_load_dword {c[6]}, {ws[0:2]}, {c[1]} glc")
        e("s_waitcnt lgkmcnt(0)")
        e(f"s_memtime {c[2:4]}")
        e(f"s_load_dword {c[6]}, {ws[0:2]}, {c[0]} glc")
        e("s_waitcnt lgkmcnt(0)")
        e(f"s_memtime {c[4:6]}")
        e(f"s_load_dword {c[6]}, {ws[0:2]}, {c[1]} glc")
        e("s_waitcnt lgkmcnt(0)")
        e(f"s_memtime {tmp}")
        e(f"s_sub_u32 {c[2]}, {c[4]}, {c[2]}")
        e("s_waitcnt lgkmcnt(0)")
        e(f"s_sub_u32 {c[4]}, {tmp[0]}, {c[4]}")
        e(f"s_cmp_lt_u32 {c[4]}, {c[2]}")
        e(f"s_cselect_b32 {c[2]}, 1, 0")
        e(f"s_bfe_u32 {c[3]}, {S['x']}, 0x10002")
        e(f"s_xor_b32 {c[2]}, {c[2]}, {c[3]}")
        e(f"s_mov_b32 {c[3]}, 0")
        e(f"s_mul_i32 {c[7]}, {c[7]}, 6")
        e(f"s_add_u32 {c[7]}, {c[7]}, 16")
        e(f"s_lshl_b64 {vote}, {c[2:4]}, {c[7]}")
        e(f"s_or_b32 {vote[0]}, {vote[0]}, 1")
        e.label(l)

    e("s_cmp_ge_u32 s2, 256")
    e("s_cbranch_scc1 L_exit")
    if p.times:
        e(f"s_memrealtime {vote}")
    e(f"s_load_dwordx2 {ws[0:2]}, s[0:1], 144")
    e(f"s_load_dwordx2 {dbg[0:2]}, s[0:1], 136")
    e(f"s_load_dwordx8 {S['wptr']}, s[0:1], 16")
    partb.emit_pointers(e)
    e(f"s_getreg_b32 {S['x']}, hwreg(HW_REG_XCC_ID, 0, 4)")
    e("v_lshrrev_b32 v1, 6, v0")
    e(f"s_mov_b32 {ws[2]}, {LY.WS_RECORDS:#x}")
    e(f"s_mov_b32 {ws[3]}, 0x20000")
    e(f"v_readfirstlane_b32 {S['w']}, v1")
    e(f"s_mov_b32 {dbg[2]}, 256")
    e(f"s_mov_b32 {dbg[3]}, 0x20000")
    e(f"s_mov_b32 {S['par']}, {0 if par is None else (0xaa if par == 0 else 0x55)}")
    e(f"s_mov_b32 {safe}, 0")
    e(f"s_mov_b32 {rdy}, {READY}")
    e(f"s_and_b32 {tmp[0]}, s2, 7")
    e(f"s_lshl_b32 {tmp[0]}, {tmp[0]}, 5")
    e(f"s_lshr_b32 {S['cu']}, s2, 3")
    e(f"s_add_u32 {S['cu']}, {S['cu']}, {tmp[0]}")
    e("s_waitcnt lgkmcnt(0)")
    if p.times:
        e(f"s_mov_b32 {tm[0]}, {vote[0]}")
    e(f"s_add_u32 {ws[0]}, {ws[0]}, 0x1fffff")
    e(f"s_addc_u32 {ws[1]}, {ws[1]}, 0")
    e(f"s_and_b32 {ws[0]}, {ws[0]}, 0xffe00000")
    e(f"v_mov_b32 v2, {TK}")
    e(f"s_mov_b64 {vote}, 1")
    e(f"s_cmp_lg_u32 {S['w']}, 0")
    e("s_cbranch_scc1 L_start")
    e(f"s_and_b32 {tmp[0]}, {S['x']}, 3")
    e(f"s_lshl_b32 {tmp[0]}, {tmp[0]}, 6")
    e(f"s_and_b32 {tmp[1]}, {S['x']}, 12")
    e(f"s_add_u32 {tmp[0]}, {tmp[0]}, {tmp[1]}")
    e(f"v_mov_b32 v3, {tmp[0]}")
    e("v_mov_b32 v4, 1")
    e("s_mov_b64 exec, 1")
    e(f"buffer_atomic_add v4, v3, {dbg}, 0 offen sc0 sc1")
    e("s_mov_b64 exec, -1")
    e.label("L_start")
    partb.emit_loads(e, S)
    e(f"s_cmp_eq_u32 {safe}, 1")
    e("s_cbranch_scc1 L_dispatch")
    e(f"s_cmp_lg_u32 {S['w']}, 0")
    e("s_cbranch_scc1 L_notfirst")
    e(f"s_waitcnt vmcnt({len(partb.LOAD_TAGS)})")
    e("s_mov_b64 exec, 1")
    e("ds_write_b32 v2, v4")
    e("s_mov_b64 exec, -1")
    e.label("L_notfirst")
    if p.early_vote:
        cast_vote(e, R("s", 60, 8))
    e("s_waitcnt lgkmcnt(0)")
    e("s_barrier")
    e("ds_read_b32 v4, v2")
    e("s_waitcnt lgkmcnt(0)")
    e(f"v_readfirstlane_b32 {S['j']}, v4")

    S["vote"] = (lambda e, c: None) if p.early_vote else cast_vote

    def arrive(e, vq, vm=None):
        e(f"v_mov_b32 {vq[0]}, {vote[0]}")
        e(f"v_mov_b32 {vq[1]}, {vote[1]}")
        e(f"v_bfrev_b32 {vq[2]}, 1")
        e(f"v_cmp_eq_u32 vcc, 64, v0")
        e.nop(2)
        e(f"v_cndmask_b32 {vq[2]}, {vq[2]}, 0, vcc")
        op = f"buffer_atomic_add_x2 {vq[0:2]}, {vq[2]}, {dbg}, {rdy} offen sc1"
        vm.op("sig", op) if vm else e(op)

    def wait_ready(e, vq, need_par=False):
        l = e.new_label("rdy")
        e(f"s_mov_b32 s3, 0")
        e.label(l)
        e(f"buffer_load_dwordx4 {vq}, off, {dbg}, {rdy} sc1")
        e(f"s_add_u32 s3, s3, 1")
        e(f"s_cmp_gt_u32 s3, {chain.SPIN_MAX}")
        e("s_cbranch_scc1 L_exit")
        e("s_waitcnt vmcnt(0)")
        e(f"v_readfirstlane_b32 {tmp[0]}, {vq[0]}")
        e(f"v_readfirstlane_b32 {tmp[1]}, {vq[1]}")
        e(f"v_readfirstlane_b32 vcc_hi, {vq[2]}")
        e(f"s_and_b32 vcc_lo, {tmp[0]}, 0xffff")
        e(f"s_cmp_lt_u32 vcc_lo, {nready}")
        e(f"s_cbranch_scc1 {l}")
        e("s_cmp_lg_u32 vcc_hi, 0")
        e("s_cbranch_scc1 L_general")
        if need_par:
            e(f"s_mov_b32 s3, 0")
            for i in range(8):
                e(f"s_bfe_u64 vcc, {tmp}, {0x60000 + 16 + 6 * i:#x}")
                e(f"{'s_sub_i32' if i & 1 else 's_add_i32'} s3, s3, vcc_lo")
            e("s_cmp_gt_i32 s3, 0")
            e(f"s_cselect_b32 s3, {nready // 16 - p.prior}, {nready // 16 + p.prior}")
            for i in range(8):
                e(f"s_bfe_u64 vcc, {tmp}, {0x60000 + 16 + 6 * i:#x}")
                e("s_cmp_gt_u32 vcc_lo, s3")
                e(f"s_cselect_b32 vcc_lo, {1 << i}, 0")
                e(f"s_or_b32 {S['par']}, {S['par']}, vcc_lo")
                e(f"s_sub_u32 s3, {nready // 8}, s3")
        if p.times:
            e(f"s_memrealtime {tmp}")
            e(f"s_memtime vcc")
            e("s_waitcnt lgkmcnt(0)")
            e(f"s_mov_b32 {tm[1]}, {tmp[0]}")
            e(f"s_mov_b32 {tm[2]}, vcc_lo")

    S["signal_ready"] = arrive
    S["wait_ready"] = wait_ready

    e(f"s_cmp_ge_u32 {S['j']}, {0 if p.force_general == 2 else 32 - p.force_general}")
    e("s_cbranch_scc1 L_odd")
    e(f"s_cmp_lt_u32 {S['x']}, 8")
    e("s_cbranch_scc1 L_dispatch")
    e.label("L_odd")
    e("v_mov_b32 v4, 1")
    e(f"buffer_store_dword v4, off, {dbg}, {rdy} offset:8 sc1")
    e("s_waitcnt vmcnt(0)")
    arrive(e, R("v", 4, 4))
    wait_ready(e, R("v", 8, 4))
    e.label("L_general")
    e("s_waitcnt vmcnt(0) lgkmcnt(0)")
    e("s_barrier")
    e(f"s_mov_b32 {safe}, 1")
    e(f"s_mov_b32 {rdy}, {READY_SAFE}")
    e(f"s_mov_b32 {S['par']}, 0")
    e(f"s_lshr_b32 {S['x']}, s2, 5")
    e(f"s_and_b32 {S['j']}, s2, 31")
    e(f"s_add_u32 {ws[0]}, {ws[0]}, 0x200000")
    e(f"s_addc_u32 {ws[1]}, {ws[1]}, 0")
    partb.emit_pointers(e)
    e("s_waitcnt lgkmcnt(0)")
    e("s_branch L_start")
    e.label("L_dispatch")
    mark = s.next
    for i, r in enumerate(p.place):
        e(f"s_cmp_eq_u32 {S['x']}, {4 + i}")
        e(f"s_cbranch_scc1 {'L_role_' + r if r in roles else 'L_exit'}")
    if "C" in roles:
        e(f"s_cmp_eq_u32 {safe}, 1")
        e("s_cbranch_scc1 L_role_G")
        chain.emit_chain(e, S, p, "", "cf")
    e.label("L_done")
    if p.times:
        e(f"s_memrealtime {vote}")
        e(f"s_memtime vcc")
        e(f"s_lshl_b32 {tmp[0]}, {S['x']}, 5")
        e(f"s_add_u32 {tmp[0]}, {tmp[0]}, {S['j']}")
        e(f"s_lshl_b32 {tmp[0]}, {tmp[0]}, 2")
        e(f"s_add_u32 {tmp[0]}, {tmp[0]}, {S['w']}")
        e(f"s_lshl_b32 {tmp[0]}, {tmp[0]}, 4")
        e(f"s_add_u32 {tmp[0]}, {tmp[0]}, {LY.TIMES}")
        e("s_mov_b64 exec, -1")
        e("s_waitcnt lgkmcnt(0) vmcnt(0)")
        e("v_mov_b32 v1, 0")
        e(f"s_sub_u32 {tm[2]}, vcc_lo, {tm[2]}")
        for i, r in enumerate((tm[0], tm[1], vote[0], tm[2])):
            e(f"v_mov_b32 v{2 + i}, {r}")
        e(f"buffer_store_dwordx4 v[2:5], v1, {ws}, {tmp[0]} offen")
        if S["prof"]:
            e(f"s_sub_u32 {tmp[0]}, {tmp[0]}, {LY.TIMES}")
            e(f"s_lshl_b32 {tmp[0]}, {tmp[0]}, 4")
            e("v_and_b32 v1, 63, v0")
            e("v_lshlrev_b32 v1, 2, v1")
            e(f"buffer_store_dword v254, v1, {ws}, {tmp[0]} offen")
    e.label("L_exit")
    e("s_endpgm")
    for r in "KVQO":
        if r in roles:
            s.next = mark
            e.label("L_role_" + r)
            proj.emit_proj(e, S, p, r, "r" + r)
    if "C" in roles:
        s.next = mark
        e.label("L_role_G")
        chain.emit_chain(e, S, p, "sc1", "cg")

    head = open(os.path.join(os.path.dirname(os.path.abspath(__file__)), "..", NAME + ".s.ref")).read().split("; Override launch")[0]
    return f"""{head}; @launch grid=(256,1,1) block=(256,1,1) lds={LDS}
.amdgcn_target "amdgcn-amd-amdhsa--gfx950"
.text
.globl {NAME}_kernel
.p2align 8
.type {NAME}_kernel,@function
{NAME}_kernel:
{e.text()}
.section .rodata,"a"
.p2align 6
.amdhsa_kernel {NAME}_kernel
  .amdhsa_next_free_vgpr 512
  .amdhsa_next_free_sgpr 102
  .amdhsa_accum_offset 256
  .amdhsa_group_segment_fixed_size 0
  .amdhsa_kernarg_size 152
  .amdhsa_user_sgpr_count 2
  .amdhsa_user_sgpr_kernarg_segment_ptr 1
  .amdhsa_system_sgpr_workgroup_id_x 1
  .amdhsa_float_denorm_mode_32 3
.end_amdhsa_kernel
"""


if __name__ == "__main__":
    sys.stdout.write(build(chain.P()))
```

```python
from emit import Regs, R, VM
import partb
import layout as LY

L_KV = 32768 + 16384
L_RT = 4096
L_VP = 14336
L_CP = 18432
L_FL = 19456
L_OB = 20480
L_ST = 57344
SM = "v_smfmac_f32_16x16x64_bf16"
MF = "v_mfma_f32_16x16x32_bf16"
MH = "v_mfma_f32_16x16x16_bf16"
SCALE_LOG2E = 0x3E0293EE
RANGE_T = 0x42200000
SPIN_MAX = 400000
DPP8 = "row_ror:8 row_mask:0xf bank_mask:0xf"


class P:
    dA = 0
    dB = 0
    dD = 0
    dF = 0
    nA = 4
    bpos = 4
    cann = 0
    dN = 6
    nD = 0
    csep = 4
    twice = True
    npc = 3
    fpos = 1
    xann = 's'
    dM = 70
    pre = (2,)
    thr = 8
    far = True
    flags = True
    stamps = False
    times = False
    wswap = 2
    warm_x = True
    wflag = dict(C='', K='', V='', Q='', O='')
    force_general = 0
    place = "KQVO"
    dbg = ""
    dstep = 4
    nsteps = 64


def emit_chain(e, S, p, st, tag):
    v = Regs("v", 0, 256)
    names = ("tid lane l16 l8 l4 idx dma rtw rtk rtr vpw ast0 ast2 aldm bst cst dst kxr vxr kmst obr "
             "own16 ownA ownA2 cin fbs fbl fis fil fcs stv oob t0 t1 t2 t3 mx zr jnk pa pb pd fms fmv").split()
    (tid, lane, l16, l8, l4, idx, dma, rtw, rtk, rtr, vpw, ast0, ast2, aldm, bst, cst, dst, kxr, vxr, kmst,
     obr, own16, ownA, ownA2, cin, fbs, fbl, fis, fil, fcs, stv, oob, t0, t1, t2, t3, mx, zr, jnk, pa, pb,
     pd, fms, fmv) = (v.alloc(n) for n in names)
    cld = v.alloc("cld", 3)
    aldx = v.alloc("aldx", 3)
    sent = v.alloc("sent", 4, 2)
    qf = v.alloc("qf", 2, 2)
    assert v.next <= partb.VLO
    accP = v.alloc("accP", 16, 2)
    accV = v.alloc("accV", 8, 2)
    accO = v.alloc("accO", 4, 2)
    fo = v.alloc("fo", 8, 2)
    F = v.alloc("F", 16, 2)
    T = v.alloc("T", 64, 2)
    U = v.alloc("U", 64, 2)
    KV, Rr, Sc, PM, A2 = U[0:16], U[16:20], U[20:32], U[32:34], U[34:38]
    Pb, E, O, Ost, Sx = U[38:42], U[42:46], U[46:54], U[54:58], U[58:64]
    X, XM, VP = T[0:12], T[12:16], T[16:28]
    Em, Ls, Lt, Lu = T[28], T[29], T[30], T[31]
    Cx, Own, Cs, Dp = T[0:12], T[12:16], T[16:20], T[20:22]
    WP = R("a", 0, 192)
    WOa = R("a", 192, 64)
    WO = lambda b: (U if b & 2 else WOa).sub(8 * (2 * (b >> 2) + (b & 1)), 8)
    T0 = R("v", 216, 28)

    ws, tsrd = S["ws"], S["tsrd"]
    sx, sj, sw = S["x"], S["j"], S["w"]
    s = S["alloc"]
    mt = s.alloc(tag + "mt", 2, 2)
    cf = s.alloc(tag + "cf", 4, 4)
    msk = s.alloc(tag + "msk", 8, 2)
    snames = "step oD oB oA oC oKV oKM a0 a1 a2 spin rD rA rC thr bD bA oFB oFD oth oFC".split()
    (step, oD, oB, oA, oC, oKV, oKM, a0, a1, a2, spin, rD, rA, rC, thr, bD, bA, oFB, oFD, oth,
     oFC) = (s.alloc(tag + n) for n in snames)
    oFS = s.alloc(tag + "oFS", 1)
    oFW = s.alloc(tag + "oFW", 3)
    oFK = s.alloc(tag + "oFK", 2)
    kv = s.alloc(tag + "kv", 2)
    assert s.next <= partb.SLO, s.next
    NST = 12
    if p.stamps:
        assert s.next <= 82
        tsp = lambda i: S["wptr"].sub(2 * i, 2) if i < 4 else R("s", 74 + 2 * i, 2)
        fails = R("s", 98, 4)
    dead = S["exit"]

    def stamp(i):
        if p.stamps is True:
            e(f"s_memtime {tsp(i)}")

    def count_fail(i):
        if p.stamps:
            e(f"s_add_u32 {fails[i]}, {fails[i]}, 1")

    def select(dstreg, val, cond):
        e(cond)
        e.nop(2)
        e(f"v_cndmask_b32 {dstreg}, {oob}, {val}, vcc")

    def cross_off(dstreg, stepreg, tmp):
        e(f"s_lshr_b32 {tmp}, {stepreg}, 3")
        e(f"s_lshr_b32 {tmp}, {S['par']}, {tmp}")
        e(f"s_and_b32 {tmp}, {tmp}, 1")
        e(f"s_lshl_b32 {tmp}, {tmp}, 13")
        e(f"s_lshl_b32 {dstreg}, {stepreg}, 18")
        e(f"s_add_u32 {dstreg}, {dstreg}, {tmp}")
        e(f"s_add_u32 {dstreg}, {dstreg}, {LY.RING_C}")

    n_, g_ = t2, t3
    vm = VM(e, partb.LOAD_TAGS)

    def consts():
        e(f"v_and_b32 {lane}, 63, {tid}")
        e(f"v_lshlrev_b32 {l16}, 4, {lane}")
        e(f"v_lshlrev_b32 {l8}, 3, {lane}")
        e(f"v_lshlrev_b32 {l4}, 2, {lane}")
        for i in range(4):
            e(f"v_mov_b32 {sent[i]}, -1")
        e(f"v_bfrev_b32 {oob}, 1")
        e(f"v_mov_b32 {zr}, 0")
        e(f"v_mov_b32 {stv}, 0")
        e(f"v_bfe_u32 {t0}, {lane}, 1, 1")
        e(f"v_mul_u32_u24 {t0}, 0xaaaa, {t0}")
        e(f"v_add_u32 {idx}, 0x4444, {t0}")
        e(f"s_lshl_b32 {a0}, {sw}, 12")
        e(f"v_add_u32 {dma}, {a0}, {l16}")
        e(f"v_and_b32 {n_}, 15, {lane}")
        e(f"v_lshrrev_b32 {g_}, 4, {lane}")
        lo8 = f"v_cmp_gt_u32 vcc, 8, {n_}"
        hi8 = f"v_cmp_le_u32 vcc, 8, {n_}"
        e(f"s_mul_i32 {a0}, {sw}, 2304")
        e(f"s_add_u32 {a0}, {a0}, {L_RT}")
        e(f"v_mul_u32_u24 {t0}, 288, {g_}")
        e(f"v_lshl_add_u32 {t0}, {n_}, 2, {t0}")
        e(f"v_add_u32 {rtw}, {a0}, {t0}")
        e(f"v_add_u32 {rtk}, 1152, {rtw}")
        e(f"v_mul_u32_u24 {t0}, 144, {n_}")
        e(f"v_lshl_add_u32 {rtr}, {g_}, 5, {t0}")
        e(f"s_lshl_b32 {a0}, {sw}, 10")
        e(f"v_add_u32 {vpw}, {a0}, {l16}")
        e(f"v_mov_b32 {t0}, {SCALE_LOG2E:#x}")
        e(lo8)
        e.nop(2)
        e(f"v_cndmask_b32 {qf[0]}, 1.0, {t0}, vcc")
        e(f"s_mul_i32 {a0}, {sj}, 1280")
        e(f"v_add_u32 {ownA}, {a0}, {l16}")
        select(ast0, ownA, lo8)
        select(ownA2, ownA, f"v_cmp_gt_u32 vcc, 16, {lane}")
        e(f"v_lshlrev_b32 {t0}, 5, {n_}")
        e(f"v_lshl_add_u32 {t0}, {g_}, 4, {t0}")
        e(f"s_add_u32 {a1}, {a0}, {1024 - 256}")
        e(f"v_add_u32 {t0}, {a1}, {t0}")
        select(t0, t0, hi8)
        select(ast2, t0, f"v_cmp_gt_u32 vcc, 2, {g_}")
        for k in range(3):
            e(f"s_xor_b32 {a0}, {sj}, {k + 1}")
            e(f"s_mul_i32 {a0}, {a0}, 1280")
            e(f"v_add_u32 {aldx[k]}, {a0}, {l16}")
        e(f"s_and_b32 {a0}, {sj}, 28")
        e(f"s_mul_i32 {a0}, {a0}, 1280")
        e(f"s_add_u32 {a0}, {a0}, 1024")
        e(f"v_add_u32 {aldm}, {a0}, {l4}")
        e(f"s_lshl_b32 {a0}, {sj}, 9")
        e(f"v_lshlrev_b32 {t0}, 4, {n_}")
        e(f"v_lshl_add_u32 {t0}, {g_}, 7, {t0}")
        e(f"v_add_u32 {t0}, {a0}, {t0}")
        select(bst, t0, lo8)
        e(f"v_lshrrev_b32 {t0}, 2, {n_}")
        e(f"v_and_b32 {mx}, 1, {n_}")
        e(f"v_lshl_add_u32 {t0}, {t0}, 1, {mx}")
        e(f"v_bfe_u32 {mx}, {n_}, 1, 1")
        e(f"v_lshl_add_u32 {t0}, {mx}, 3, {t0}")
        e(f"v_lshl_add_u32 {t0}, {g_}, 4, {t0}")
        e(f"v_lshlrev_b32 {obr}, 4, {t0}")
        e(f"v_add_u32 {t0}, {a0}, {l16}")
        select(own16, t0, f"v_cmp_gt_u32 vcc, 32, {lane}")
        e(f"v_lshrrev_b32 {t0}, 5, {lane}")
        e(f"v_lshlrev_b32 {t0}, 8, {t0}")
        e(f"v_bfe_u32 {mx}, {lane}, 1, 3")
        e(f"v_lshl_add_u32 {t0}, {mx}, 5, {t0}")
        e(f"v_bfe_u32 {mx}, {lane}, 4, 1")
        e(f"v_lshl_add_u32 {t0}, {mx}, 4, {t0}")
        e(f"v_and_b32 {mx}, 1, {lane}")
        e(f"v_lshl_add_u32 {t0}, {mx}, 3, {t0}")
        e(f"v_add_u32 {dst}, {a0}, {t0}")
        e(f"s_lshr_b32 {a0}, {sj}, 1")
        e(f"s_lshl_b32 {a0}, {a0}, 14")
        e(f"s_and_b32 {a1}, {sj}, 1")
        e(f"s_lshl_b32 {a1}, {a1}, 12")
        e(f"s_add_u32 {a0}, {a0}, {a1}")
        e(f"v_mov_b32 {fcs}, {oob}")
        for k in range(3):
            e(f"s_add_u32 {a1}, {sx}, {k + 1}")
            e(f"s_and_b32 {a1}, {a1}, 3")
            e(f"s_lshl_b32 {a1}, {a1}, 10")
            e(f"s_add_u32 {a1}, {a1}, {a0}")
            e(f"v_add_u32 {cld[k]}, {a1}, {l16}")
            e(f"s_add_u32 {a1}, {a1}, {k * p.csep}")
            e(f"v_writelane_b32 {fcs}, {a1}, {k}")
            e(f"s_mov_b32 {oFW[k]}, {a1}")
        e(f"s_lshl_b32 {a1}, {sx}, 10")
        e(f"s_add_u32 {a0}, {a0}, {a1}")
        e(f"v_add_u32 {cin}, {a0}, {l16}")
        e(f"s_mov_b32 {oFS[0]}, {a0}")
        e(f"s_and_b32 {a1}, {sw}, 1")
        e(f"s_lshl_b32 {a1}, {a1}, 9")
        e(f"s_add_u32 {a0}, {a0}, {a1}")
        e(f"v_add_u32 {cst}, {a0}, {l4}")
        e(f"v_lshrrev_b32 {t0}, 2, {n_}")
        e(f"v_and_b32 {mx}, 3, {n_}")
        e(f"v_lshl_add_u32 {t0}, {t0}, 3, {mx}")
        e(f"v_lshlrev_b32 {t0}, 4, {t0}")
        e(f"v_lshl_add_u32 {kxr}, {g_}, 9, {t0}")
        e(f"v_lshlrev_b32 {t0}, 4, {n_}")
        e(f"v_lshl_add_u32 {vxr}, {g_}, 9, {t0}")
        e(f"v_lshl_add_u32 {t0}, {g_}, 7, {t0}")
        e(f"v_subrev_u32 {t0}, 128, {t0}")
        select(kmst, t0, hi8)
        e(f"s_lshl_b32 {a0}, {sx}, 3")
        e(f"s_lshr_b32 {a1}, {sj}, 2")
        e(f"s_add_u32 {a0}, {a0}, {a1}")
        e(f"s_lshl_b32 {a0}, {a0}, 7")
        e(f"s_and_b32 {a1}, {sj}, 3")
        e(f"s_lshl_b32 {a1}, {a1}, 2")
        e(f"s_add_u32 {a0}, {a0}, {a1}")
        e(f"s_add_u32 {oFK[0]}, {a0}, {LY.FK}")
        e(f"s_add_u32 {oFK[1]}, {a0}, {LY.FK + 16}")
        e(f"s_add_u32 {a0}, {a0}, {LY.FK + 32}")
        e(f"v_mov_b32 {t0}, {a0}")
        select(fms, t0, f"v_cmp_eq_u32 vcc, 0, {lane}")
        e(f"s_lshr_b32 {a0}, {sj}, 3")
        e(f"s_lshl_b32 {a1}, {sj}, 2")
        e(f"v_lshl_add_u32 {t0}, {lane}, 8, {a1}")
        select(fbs, t0, f"v_cmp_gt_u32 vcc, 4, {lane}")
        select(fbs, fbs, f"v_cmp_ne_u32 vcc, {a0}, {lane}")
        e(f"v_lshrrev_b32 {mx}, 3, {lane}")
        e(f"s_and_b32 {a1}, {a1}, 28")
        e(f"s_sub_u32 {a1}, {a1}, {4096 - 1024}")
        e(f"v_lshl_add_u32 {t0}, {lane}, 7, {a1}")
        e(f"s_add_u32 {a1}, {a0}, 4")
        e(f"v_cmp_eq_u32 vcc, {a1}, {mx}")
        e.nop(2)
        e(f"v_cndmask_b32 {fbs}, {fbs}, {t0}, vcc")
        e(f"s_add_u32 {a1}, {sj}, 32")
        select(fbs, fbs, f"v_cmp_ne_u32 vcc, {a1}, {lane}")
        e(f"s_lshl_b32 {a1}, {a0}, 8")
        e(f"v_add_u32 {fbl}, {a1}, {l4}")
        e(f"s_lshl_b32 {a1}, {sj}, 7")
        e(f"s_add_u32 {a1}, {a1}, 1024")
        e(f"v_and_b32 {t0}, 28, {l4}")
        e(f"v_add_u32 {t0}, {a1}, {t0}")
        e(f"v_cmp_eq_u32 vcc, {a0}, {mx}")
        e.nop(2)
        e(f"v_cndmask_b32 {fbl}, {fbl}, {t0}, vcc")
        e(f"s_lshl_b32 {oth}, 1, {sj}")
        e(f"s_not_b32 {oth}, {oth}")
        e(f"s_lshr_b32 {a0}, {sj}, 2")
        e(f"s_lshl_b32 {a0}, {a0}, 8")
        e(f"s_add_u32 {a0}, {a0}, 6144")
        e(f"v_add_u32 {fil}, {a0}, {l4}")
        e(f"s_and_b32 {a1}, {sj}, 3")
        select(fis, fil, f"v_cmp_eq_u32 vcc, {a1}, {lane}")
        e(f"s_mov_b32 {thr}, {RANGE_T:#x}")
        e(f"s_lshl_b32 {bD}, {sx}, 16")
        e(f"s_lshl_b32 {bA}, {sx}, 18")
        e(f"s_add_u32 {bA}, {bA}, {LY.RING_A}")
        e(f"s_add_u32 {bD}, {bD}, {LY.RING_D}")
        e(f"s_lshl_b32 {oFB}, {sx}, 14")
        e(f"s_add_u32 {oFB}, {oFB}, {LY.FLAGS}")
        e(f"s_add_u32 {oFD}, {oFB}, 8192")


    def init_loads():
        e(f"s_lshl_b32 {a0}, {sw}, 14")
        e(f"s_add_u32 {oD}, {bD}, {a0}")
        e(f"s_add_u32 {oB}, {oD}, {LY.RING_B - LY.RING_D}")
        e(f"s_lshl_b32 {a0}, {sw}, 16")
        e(f"s_add_u32 {oA}, {bA}, {a0}")
        e(f"s_lshl_b32 {oC}, {sw}, 18")
        e(f"s_add_u32 {oC}, {oC}, {LY.RING_C}")
        e(f"s_add_u32 {rC}, {oC}, 8192")
        e(f"s_mov_b32 {oFC}, {LY.RING_C + (63 << 18)}")
        e(f"s_mov_b32 {rD}, {LY.RING_C + (63 << 18) + 8192}")
        vm.op("il", f"buffer_load_dwordx4 {T0[0:4]}, {own16}, {ws}, {oD} offen sc1")
        vm.op("il", f"buffer_load_dwordx4 {T0[4:8]}, {own16}, {ws}, {oB} offen sc1")
        vm.op("il", f"buffer_load_dwordx4 {T0[8:12]}, {ownA}, {ws}, {oA} offen sc1")
        vm.op("il", f"buffer_load_dwordx4 {T0[12:16]}, {ownA2}, {ws}, {oA} offen offset:1024 sc1")
        vm.op("il", f"buffer_load_dword {T0[20]}, {fbs}, {ws}, {oFB} offen sc1")
        vm.op("il", f"buffer_load_dword {T0[21]}, {fis}, {ws}, {oFB} offen sc1")
        vm.op("il", f"buffer_load_dword {T0[22]}, {fbs}, {ws}, {oFD} offen sc1")
        e(f"s_load_dwordx2 {cf[0:2]}, s[0:1], 8")
        e(f"v_lshrrev_b32 {mx}, 2, {n_}")
        e(f"v_lshlrev_b32 {mx}, 1, {mx}")
        e(f"v_and_b32 {t0}, 1, {n_}")
        e(f"v_add_u32 {mx}, {mx}, {t0}")
        e(f"v_lshlrev_b32 {mx}, 11, {mx}")
        e(f"v_lshl_add_u32 {mx}, {g_}, 5, {mx}")
        e(f"v_bfe_u32 {t0}, {n_}, 1, 1")
        e(f"v_lshl_add_u32 {mx}, {t0}, 4, {mx}")
        e(f"s_lshl_b32 {a0}, {sj}, 6")
        e(f"s_mov_b32 {cf[2]}, 16384")
        e(f"s_mov_b32 {cf[3]}, 0x20000")
        e("s_waitcnt lgkmcnt(0)")
        vm.op("il", f"buffer_load_dwordx4 {T0[16:20]}, {mx}, {cf}, {a0} offen")

    def init_stores():
        vm.wait("il")
        e(f"s_cmp_eq_u32 {sw}, 0")
        e(f"s_cselect_b64 vcc, -1, 0")
        for i in range(4):
            e(f"v_min_u32 {T0[16 + i]}, -2, {T0[16 + i]}")
            e(f"v_cndmask_b32 {T0[16 + i]}, -1, {T0[16 + i]}, vcc")
        vm.op("is", f"buffer_store_dwordx4 {T0[16:20]}, {own16}, {ws}, {oD} offen {st}")
        vm.op("is", f"buffer_store_dwordx4 {sent}, {own16}, {ws}, {oB} offen {st}")
        vm.op("is", f"buffer_store_dwordx4 {sent}, {ownA}, {ws}, {oA} offen {st}")
        vm.op("is", f"buffer_store_dwordx4 {sent}, {ownA2}, {ws}, {oA} offen offset:1024 {st}")
        vm.op("is", f"buffer_store_dwordx4 {sent}, {cin}, {ws}, {oC} offen sc1")
        vm.op("is", f"buffer_store_dwordx4 {sent}, {cin}, {ws}, {rC} offen sc1")
        vm.op("is", f"buffer_store_dword {zr}, {fcs}, {ws}, {rD} offen sc1")
        vm.op("is", f"buffer_store_dword {zr}, {fbs}, {ws}, {oFB} offen {st}")
        vm.op("is", f"buffer_store_dword {zr}, {fis}, {ws}, {oFB} offen {st}")
        vm.op("is", f"buffer_store_dword {zr}, {fbs}, {ws}, {oFD} offen {st}")
        vm.op("is", f"buffer_store_dword {zr}, {fcs}, {ws}, {oFC} offen sc1")
        vm.op("is", f"buffer_store_dword {zr}, {fms}, {ws}, 0 offen sc1")

    wa13, wa11, tr1, tr3 = pa, pb, pd, jnk
    wptr, oW13, oW11, oL = S["wptr"], msk[0:2], msk[2:4], msk[4:6]

    def setup():
        e(f"s_mov_b32 {tsrd[2]}, {8 << 20}")
        e(f"s_mov_b32 {tsrd[3]}, 0x20000")
        e(f"v_and_b32 {lane}, 63, {tid}")
        e(f"v_lshrrev_b32 {t0}, 2, {lane}")
        e(f"v_and_b32 {t1}, 3, {lane}")
        e(f"v_lshlrev_b32 {t1}, 4, {t1}")
        e(f"v_lshl_add_u32 {wa13}, {t0}, 13, {t1}")
        e(f"v_lshl_add_u32 {wa11}, {t0}, 11, {t1}")
        e(f"s_lshl_b32 {a0}, {sx}, 5")
        e(f"s_add_u32 {a0}, {a0}, {sj}")
        e(f"s_lshl_b32 {a0}, {a0}, 6")
        e(f"s_lshl_b32 {a1}, {sw}, 21")
        e(f"s_add_u32 {oW13[0]}, {a0}, {a1}")
        e(f"s_lshl_b32 {a0}, {sx}, 21")
        e(f"s_lshl_b32 {a1}, {sj}, 6")
        e(f"s_add_u32 {a0}, {a0}, {a1}")
        e(f"s_lshl_b32 {a1}, {sw}, 19")
        e(f"s_add_u32 {oW11[0]}, {a0}, {a1}")
        e(f"s_lshl_b32 {oL[0]}, {sw}, 13")
        e(f"s_and_b32 {a0}, {sj}, 1")
        e(f"s_mul_i32 {a0}, {a0}, {p.wswap}")
        for r, sh in ((oW13, 17), (oW11, 15), (oL, 10)):
            e(f"s_lshl_b32 {a1}, {a0}, {sh}")
            e(f"s_sub_u32 {r[1]}, {r[0]}, {a1}")
            e(f"s_add_u32 {r[0]}, {r[0]}, {a1}")

    def tr_addr(dstreg, sh_hb, sh_g0, sh_g1):
        e(f"v_bfe_u32 {dstreg}, {lane}, 2, 1")
        for bit, sh in ((3, sh_hb), (4, sh_g0), (5, sh_g1)):
            e(f"v_bfe_u32 {t0}, {lane}, {bit}, 1")
            e(f"v_lshl_add_u32 {dstreg}, {t0}, {sh}, {dstreg}")
        e(f"v_lshlrev_b32 {dstreg}, 6, {dstreg}")
        e(f"v_and_b32 {t0}, 3, {lane}")
        e(f"v_lshl_add_u32 {dstreg}, {t0}, 3, {dstreg}")

    def tr_tile(W, addr, extra):
        for r in (0, 2, 4, 6):
            off = (32 * (r >> 2) + 2 * ((r >> 1) & 1)) * 64 + extra
            e(f"ds_read_b64_tr_b16 {W.sub(r, 2)}, {addr} offset:{off}")

    def stage(n):
        m, pitch = n >> 1, (11 if n >= 6 else 13)
        if n & 1 == 0:
            e(f"s_mov_b64 {tsrd[0:2]}, {wptr.sub(2 * m, 2)}")
        for i in range(8):
            k = 1 if i & p.wswap else 0
            e(f"s_add_u32 m0, {oL[k]}, {32768 * (n & 1) + 1024 * i}")
            e(f"s_add_u32 {a0}, {(oW11 if n >= 6 else oW13)[k]}, {(8 * (n & 1) + i) << (4 + pitch)}")
            vm.op(f"w{n}", f"buffer_load_dwordx4 {wa11 if n >= 6 else wa13}, {tsrd}, {a0} offen {p.wflag['C']} lds")

    def service(n):
        vm.wait(f"w{n}")
        if n < 6:
            for bb in range(2):
                for t in range(2):
                    tr_tile(WP.sub(8 * ((2 * (n & 1) + bb) * 6 + 2 * (n >> 1) + t), 8), tr1, 32768 * (n & 1) + 4096 * bb + 32 * t)
                e("s_waitcnt lgkmcnt(0)")
            stage(n + 2)
        else:
            e("s_barrier")
            for q in range(4):
                for bb in range(2):
                    tr_tile(WO(4 * q + 2 * (n & 1) + bb), tr3, 32768 * (n & 1) + 8192 * q + 4096 * bb)
                e("s_waitcnt lgkmcnt(0)")

    def hook(n):
        if n == 0:
            setup()
            stage(0)
            consts()
            init_loads()
            tr_addr(tr1, 3, 2, 4)
            tr_addr(tr3, 2, 4, 3)
            e(f"s_lshl_b32 {a1}, {sw}, 13")
            e(f"v_add_u32 {tr1}, {a1}, {tr1}")
            e(f"s_and_b32 {a1}, {sw}, 1")
            e(f"s_lshl_b32 {a1}, {a1}, 5")
            e(f"v_add_u32 {tr3}, {a1}, {tr3}")
            stage(1)
        elif n <= 7:
            if n == 1:
                init_stores()
            service(n - 1)
            if n == 4:
                S["signal_ready"](e, T0[0:4], vm)
        elif n == 9:
            service(7)

    partb.emit_rest(e, S, tag + "b", vm, hook)
    e("s_barrier")
    for r in (pa, pb, pd):
        e(f"v_mov_b32 {r}, 0")
    S["wait_ready"](e, fo[4:8], S["calibrate"] and st == "")
    if p.dbg == "pro":
        e(f"s_branch {dead}")

    e(f"s_mov_b32 {a0}, 63")
    cross_off(oFC, a0, a1)
    e(f"s_add_u32 {oFS[0]}, {oFS[0]}, {oFC}")
    for k in range(3):
        e(f"s_add_u32 {oFW[k]}, {oFW[k]}, {oFC}")
    e(f"s_mov_b32 {step}, 0")
    e(f"s_mov_b32 {oD}, {bD}")
    e(f"s_lshl_b32 {a0}, {sx}, 5")
    e(f"s_add_u32 {a0}, {a0}, {sj}")
    e(f"s_lshl_b32 {oKV}, {a0}, 11")
    e(f"s_add_u32 {oKV}, {oKV}, {LY.KX}")
    e(f"s_lshl_b32 {oKM}, {a0}, 9")
    e(f"s_add_u32 {oKM}, {oKM}, {LY.KM}")
    e(f"s_mov_b32 {spin}, 0")
    for i in range(4):
        e(f"s_mov_b32 {cf[i]}, 0")
    if p.stamps:
        e(f"s_lshl_b32 {a0}, {sw}, 13")
        e(f"s_add_u32 {a0}, {a0}, 32768")
        e(f"v_lshl_add_u32 {t3}, {lane}, 2, {a0}")
        for i in range(4):
            e(f"s_mov_b32 {fails[i]}, 0")
        for i in range(NST):
            e(f"s_mov_b32 {tsp(i)[0]}, 0")

    lab = {w: f"L_{tag}_w{w}" for w in range(4)}
    for w in (1, 2, 3):
        e(f"s_cmp_eq_u32 {sw}, {w}")
        e(f"s_cbranch_scc1 {lab[w]}")

    def spin_check():
        e(f"s_add_u32 {spin}, {spin}, 1")
        e(f"s_cmp_gt_u32 {spin}, {SPIN_MAX}")
        e(f"s_cbranch_scc1 {dead}")

    def load_kv_words():
        e(f"s_load_dword {kv[0]}, {ws[0:2]}, {oFK[0]} glc")
        e(f"s_load_dword {kv[1]}, {ws[0:2]}, {oFK[1]} glc")

    def wait_kv(name, need):
        if not p.flags:
            return
        e.label(name)
        e(f"s_min_u32 {a0}, {kv[0]}, {kv[1]}")
        e(f"s_cmp_gt_u32 {a0}, {need}")
        e(f"s_cbranch_scc1 {name}_ok")
        load_kv_words()
        spin_check()
        e("s_waitcnt lgkmcnt(0)")
        e(f"s_branch {name}")
        e.label(name + "_ok")

    def prefetch_kv():
        e(f"s_mov_b32 m0, {L_KV}")
        e(f"s_add_u32 {a0}, {oKV}, {LY.VX - LY.KX - 2048}")
        e(f"buffer_load_dwordx4 {l16}, {ws}, {oKV} offen sc1 lds")
        e(f"buffer_load_dwordx4 {l16}, {ws}, {oKV} offen offset:1024 sc1 lds")
        e(f"buffer_load_dwordx4 {l16}, {ws}, {a0} offen offset:2048 sc1 lds")
        e(f"buffer_load_dwordx4 {l16}, {ws}, {a0} offen offset:3072 sc1 lds")

    def publish_km():
        e(f"s_add_u32 {a0}, {oKM}, {LY.VM - LY.KM}")
        e(f"buffer_store_dwordx4 {Rr}, {kmst}, {ws}, {oKM} offen sc1")
        e(f"buffer_store_dword {A2[0]}, {l4}, {ws}, {a0} offen sc1")
        e(f"buffer_store_dword {A2[2]}, {l4}, {ws}, {a0} offen offset:256 sc1")

    def zero(acc):
        for i in range(acc.n):
            e(f"v_mov_b32 {acc[i]}, 0")

    for w in range(4):
        L = lambda n: f"L_{tag}_w{w}_{n}"
        order = [k ^ w for k in range(4)]

        def load_block(b, off):
            e(f"buffer_load_dwordx4 {F.sub(4 * b, 4)}, {dma}, {ws}, {off} offen offset:{1024 * b} sc1")

        def issue(off):
            for k, b in enumerate(order):
                load_block(b, off)
                if k < 3:
                    e("s_nop 3")

        def products(b):
            for t in range(4):
                e(f"{SM} {accP.sub(4 * t, 4)}, {F.sub(4 * b, 4)}, {WP.sub(8 * (b * 6 + t), 8)}, {idx}")

        def vsm(i):
            b, t = i >> 1, i & 1
            e(f"{SM} {accV.sub(4 * t, 4)}, {F.sub(4 * b, 4)}, {WP.sub(8 * (b * 6 + 4 + t), 8)}, {idx}")

        def fold2(acc):
            e(f"v_pk_add_f32 {fo[0:2]}, {acc[0:2]}, {acc[2:4]}")
            e(f"v_pk_add_f32 {fo[2:4]}, {acc[4:6]}, {acc[6:8]}")

        def read_parts(base):
            for i, q in enumerate(q for q in range(4) if q != w):
                e(f"ds_read_b128 {VP.sub(4 * i, 4)}, {l16} offset:{base + 1024 * q}")

        def sum_parts():
            for i in range(3):
                e(f"s_waitcnt lgkmcnt({2 - i})")
                e(f"v_pk_add_f32 {fo[0:2]}, {fo[0:2]}, {VP.sub(4 * i, 2)}")
                e(f"v_pk_add_f32 {fo[2:4]}, {fo[2:4]}, {VP.sub(4 * i + 2, 2)}")

        def last_step_exit():
            e(f"s_cmp_eq_u32 {step}, {p.nsteps - 1}")
            e(f"s_cbranch_scc1 {L('done')}")

        def dump_stamps():
            if p.stamps == "lite" and w == 3:
                e(f"s_cmp_lg_u32 {step}, 8")
                e(f"s_cbranch_scc1 {L('nolite')}")
                e(f"s_memrealtime {tsp(0)}")
                e.label(L("nolite"))
            if p.stamps is True and w < 3:
                e("s_waitcnt lgkmcnt(0)")
                for i in range(NST):
                    e(f"v_writelane_b32 {t1}, {tsp(i)[0]}, {i}")
                for i in range(4):
                    e(f"v_writelane_b32 {t1}, {fails[i]}, {12 + i}")
                e(f"ds_write_b32 {t3}, {t1} offset:{L_ST - 32768}")
                e(f"v_add_u32 {t3}, 64, {t3}")

        def word(addr, off):
            e(f"buffer_store_dword {stv}, {addr}, {ws}, {off} offen {st}")

        def gate(name, reg, addr, off, lanes):
            ld = f"buffer_load_dword {reg}, {addr}, {ws}, {off} offen sc1"
            e(f"s_mov_b32 exec_lo, {lanes}")
            e("s_mov_b32 exec_hi, 0")
            e.label(L(name + "poll"))
            for _ in range(10):
                e(f"v_cmp_gt_u32 vcc, {stv}, {reg}")
                e(ld)
                if p.twice:
                    e("s_nop 2")
                    e(ld)
                e(f"s_cbranch_vccz {L(name + 'go')}")
            e("s_waitcnt vmcnt(36)")
            e(f"s_add_u32 {spin}, {spin}, 1")
            e(f"s_cmp_lt_u32 {spin}, {SPIN_MAX}")
            e(f"s_cbranch_scc1 {L(name + 'poll')}")
            e(f"s_branch {dead}")
            e.label(L(name + "go"))
            e("s_mov_b64 exec, -1")

        e.label(lab[w])
        if w == 0:
            e(f"v_mov_b32 {PM[1]}, 0")
            e(f"v_mov_b32 {A2[1]}, 0")
            e(f"v_mov_b32 {A2[3]}, 0")
        if w == 1:
            e(f"s_mov_b32 {kv[0]}, 0")
            e(f"s_mov_b32 {kv[1]}, 0")
            wait_kv(L("kv0"), 0)
            prefetch_kv()
        zero(accP)
        zero(accV)
        e("s_waitcnt vmcnt(0)")
        e("s_barrier")
        issue(oD)
        e.label(L("loop"))
        dump_stamps()
        e(f"s_and_b32 {a0}, {step}, 3")
        e(f"s_add_u32 {oB}, {oD}, {LY.RING_B - LY.RING_D}")
        e(f"s_lshl_b32 {a1}, {a0}, 16")
        e(f"s_add_u32 {oA}, {bA}, {a1}")
        e(f"v_add_u32 {stv}, 1, {stv}")
        if w == 0:
            e(f"ds_read_b128 {KV[0:4]}, {kxr} offset:{L_KV}")
            e(f"ds_read_b128 {KV[4:8]}, {kxr} offset:{L_KV + 64}")
            e(f"ds_read_b128 {KV[8:12]}, {vxr} offset:{L_KV + 2048}")
            e(f"ds_read_b128 {KV[12:16]}, {vxr} offset:{L_KV + 2048 + 256}")
        e.label(L("dtry"))
        for k, b in enumerate(order):
            e(f"s_waitcnt vmcnt({3 - k})")
            products(b)
        if w == 0:
            stamp(1)
        e.nop(5)
        for t in range(4):
            e(f"v_pk_add_f32 {fo.sub(2 * t, 2)}, {accP.sub(4 * t, 2)}, {accP.sub(4 * t + 2, 2)}")
            e(f"ds_write2_b32 {rtw if t < 2 else rtk}, {fo[2 * t]}, {fo[2 * t + 1]} offset0:{16 * (t & 1)} offset1:{16 * (t & 1) + 36}")
            if t == 0:
                e(f"v_cmp_u_f32 vcc, {fo[0]}, {fo[1]}")
        e(f"s_cbranch_vccnz {L('dslow')}")
        e.label(L("dgood"))
        for i in range(4):
            vsm(i)
        e("s_waitcnt lgkmcnt(0)")
        e("s_barrier")
        if w == 0:
            stamp(0)
            for q in range(8):
                e(f"ds_read_b128 {T.sub(4 * q, 4)}, {rtr} offset:{L_RT + 2304 * (q >> 1) + 16 * (q & 1)}")
            vsm(4)
            e("s_waitcnt lgkmcnt(6)")
            for i in range(4):
                e(f"v_pk_mul_f32 {T.sub(2 * i, 2)}, {T.sub(2 * i, 2)}, {qf} op_sel_hi:[1,0]")
            for q in range(1, 4):
                e(f"s_waitcnt lgkmcnt({6 - 2 * q})")
                for i in range(4):
                    e(f"v_pk_fma_f32 {T.sub(2 * i, 2)}, {T.sub(8 * q + 2 * i, 2)}, {qf}, {T.sub(2 * i, 2)} op_sel_hi:[1,0,1]")
            for i in range(4):
                e(f"v_cvt_pk_bf16_f32 {Rr[i]}, {T[2 * i]}, {T[2 * i + 1]}")
            e.nop(2)
            e(f"{MF} {Sc[0:4]}, {KV[0:4]}, {Rr}, 0")
            e(f"{MF} {Sc[4:8]}, {KV[4:8]}, {Rr}, 0")
            e(f"{MF} {Sc[8:12]}, {Rr}, {Rr}, 0")
            e.nop(6)
            e(f"buffer_store_dwordx4 {Sc[0:4]}, {ast0}, {ws}, {oA} offen {st}")
            e(f"buffer_store_dwordx4 {Sc[4:8]}, {ast0}, {ws}, {oA} offen offset:128 {st}")
            e(f"buffer_store_dwordx4 {Sc[8:12]}, {ast2}, {ws}, {oA} offen {st}")
            stamp(2)

            def aloads():
                for q in range(3):
                    e(f"buffer_load_dwordx4 {X.sub(4 * q, 4)}, {aldx[q]}, {ws}, {oA} offen sc1")
                for q in range(4):
                    e(f"buffer_load_dword {XM[q]}, {aldm}, {ws}, {oA} offen offset:{1280 * q} sc1")

            def asum():
                ex = 0
                for q in range(3):
                    e(f"s_waitcnt vmcnt({ex + 6 - q})")
                    if q == p.bpos:
                        word(fbs, oFB)
                        ex = 1
                    src = Sc if q == 0 else Sx
                    e(f"v_pk_add_f32 {Sx[0:2]}, {src[0:2]}, {X.sub(4 * q, 2)}")
                    e(f"v_pk_add_f32 {Sx[2:4]}, {src[2:4]}, {X.sub(4 * q + 2, 2)}")
                e(f"v_maximum3_f32 {mx}, |{Sx[0]}|, |{Sx[1]}|, |{Sx[2]}|")
                e(f"s_waitcnt vmcnt({ex})")
                if p.bpos == 3:
                    word(fbs, oFB)
                e(f"v_pk_add_f32 {Sx[4:6]}, {XM[0:2]}, {XM[2:4]}")
                e(f"v_add_f32 {Sx[4]}, {Sx[4]}, {Sx[5]}")
                e(f"v_maximum3_f32 {mx}, {mx}, |{Sx[3]}|, |{Sx[4]}|")
                e(f"v_cmp_ngt_f32 vcc, {thr}, {mx}")

            def exps():
                for i in range(4):
                    e(f"v_exp_f32 {E[i]}, {Sx[i]}")
                e(f"v_exp_f32 {Em}, {Sx[4]}")

            vsm(5)
            vsm(6)
            vsm(7)
            e("s_barrier")
            stamp(10)
            aloads()
            read_parts(L_VP)
            fold2(accV)
            for i in range(4):
                e(f"v_mov_b32_dpp {Sc[i]}, {Sc[4 + i]} row_ror:8 row_mask:0xf bank_mask:0xc")
            sum_parts()
            e(f"v_cvt_pk_bf16_f32 {A2[0]}, {fo[0]}, {fo[1]}")
            e(f"v_cvt_pk_bf16_f32 {A2[2]}, {fo[2]}, {fo[3]}")
            last_step_exit()
            e.label(L("atry"))
            asum()
            exps()
            e(f"s_cbranch_vccnz {L('abad')}")
            e.label(L("agood"))
            if p.bpos == 4:
                word(fbs, oFB)
            stamp(3)
            e(f"v_cvt_pk_bf16_f32 {Pb[0]}, {E[0]}, {E[1]}")
            e(f"v_cvt_pk_bf16_f32 {Pb[1]}, {E[2]}, {E[3]}")
            e(f"v_mov_b32_dpp {Lt}, {Em} {DPP8}")
            e(f"v_mov_b32_dpp {Pb[2]}, {Pb[0]} {DPP8}")
            e(f"v_mov_b32_dpp {Pb[3]}, {Pb[1]} {DPP8}")
            e(f"v_cvt_pk_bf16_f32 {PM[0]}, {Em}, {Lt}")
            e(f"v_pk_add_f32 {E[0:2]}, {E[0:2]}, {E[2:4]}")
            e(f"{MF} {O[0:4]}, {KV[8:12]}, {Pb}, 0")
            e(f"v_add_f32 {Ls}, {E[0]}, {E[1]}")
            e(f"v_add_f32 {Ls}, {Ls}, {Em}")
            e(f"{MF} {O[4:8]}, {KV[12:16]}, {Pb}, 0")
            e("s_nop 0")
            e(f"v_add_f32_dpp {Lt}, {Ls}, {Ls} {DPP8}")
            e(f"v_add_f32_dpp {Lu}, {Ls}, {Ls} {DPP8}")
            e(f"{MH} {O[0:4]}, {A2[0:2]}, {PM}, {O[0:4]}")
            e("s_nop 0")
            e(f"v_permlane16_swap_b32 {Lt}, {Lu}")
            e(f"{MH} {O[4:8]}, {A2[2:4]}, {PM}, {O[4:8]}")
            e(f"v_add_f32 {Ls}, {Lt}, {Lu}")
            e(f"v_add_f32 {Lt}, {Lt}, {Lu}")
            e("s_nop 1")
            e(f"v_permlane32_swap_b32 {Ls}, {Lt}")
            e("s_nop 0")
            e(f"v_add_f32 {Ls}, {Ls}, {Lt}")
            e(f"v_rcp_f32 {E[0]}, {Ls}")
            e(f"s_mov_b32 m0, {L_OB + 4096 * w}")
            for i in range(4):
                e(f"v_pk_mul_f32 {O.sub(2 * i, 2)}, {O.sub(2 * i, 2)}, {E[0:2]} op_sel_hi:[1,0]")
            for i in range(4):
                e(f"v_cvt_pk_bf16_f32 {Ost[i]}, {O[2 * i]}, {O[2 * i + 1]}")
            e(f"buffer_store_dwordx4 {Ost}, {bst}, {ws}, {oB} offen {st}")
            stamp(4)
        else:
            for i in range(4, 8):
                if w == 1 and p.nA == i - 4:
                    word(fis, oFB)
                vsm(i)
            if w == 1 and p.nA == 4:
                word(fis, oFB)
            e.nop(8)
            fold2(accV)
            e(f"ds_write_b128 {vpw}, {fo[0:4]} offset:{L_VP}")
            if w == 1:
                gate("a", pa, fil, oFB, 15)
                e.nop(p.dA)
            e("s_waitcnt lgkmcnt(0)")
            e("s_barrier")
            last_step_exit()
            cross_off(oC, step, a1)
            e(f"s_mov_b32 m0, {L_OB + 4096 * w}")
            if w >= 2:
                zero(accO)
            if w == 3:
                e(f"s_xor_b32 {rD}, {oD}, 0x8000")
                e(f"s_xor_b32 {rA}, {oA}, 0x20000")
            if w == 1:
                e(f"s_add_u32 {a2}, {step}, 4")
                cross_off(rC, a2, a1)
                e(f"s_cmp_gt_u32 {a2}, 62")
                e(f"s_cselect_b32 {rC}, {LY.OOB >> 1}, {rC}")
                e(f"s_add_u32 {oKV}, {oKV}, 0x40000")
                if p.flags:
                    e(f"s_add_u32 {a2}, {step}, 1")
                    wait_kv(L("kv"), a2)
                    e(f"s_add_u32 {a1}, {step}, 3")
                    e(f"s_min_u32 {a1}, {a1}, 63")
                    e(f"s_cmp_gt_u32 {a0}, {a1}")
                    e(f"s_cbranch_scc1 {L('kvfresh')}")
                    load_kv_words()
                    e.label(L("kvfresh"))
                gate("b", pb, fbl, oFB, oth)
                e.nop(p.dB)

        def issue_out():
            for k, b in enumerate(order):
                e(f"buffer_load_dwordx4 {dma}, {ws}, {oB} offen offset:{1024 * b} sc1 lds")
                if k < 3:
                    e("s_nop 3")

        def chunk_barriers():
            for c in range(4):
                e(f"s_waitcnt vmcnt({3 - c})")
                e("s_barrier")

        def retry_check():
            if w == 0:
                e(f"v_mov_b32 {t0}, 1")
            e(f"ds_read_b32 {t0}, {zr} offset:{L_FL}")
            if w == 1:
                e(f"ds_read_b128 {Own}, {l16} offset:{L_CP}")
                e("s_waitcnt lgkmcnt(0)")
            else:
                e.label(L("fspin"))
                e(f"v_cmp_eq_u32 vcc, 1, {t0}")
                e(f"s_cbranch_vccnz {L('fspin')}")
            e(f"v_cmp_ne_u32 vcc, 0, {t0}")
            e(f"s_cbranch_vccnz {L('bretry')}")

        e("s_barrier")
        issue_out()
        e(f"s_add_u32 {step}, {step}, 1")
        e(f"s_and_b32 {a2}, {step}, 3")
        e(f"s_lshl_b32 {a2}, {a2}, 14")
        e(f"s_add_u32 {oD}, {bD}, {a2}")
        zero(accP)
        zero(accV)
        if w >= 2:
            e.label(L("bwait"))
            blocks = lambda c: [4 * q + (c ^ q) for q in range(4)]

            def rd(c):
                for b in blocks(c):
                    e(f"ds_read_b128 {T.sub(4 * b, 4)}, {obr} offset:{L_OB + 1024 * b}")
            e("s_waitcnt vmcnt(3)")
            e("s_barrier")
            rd(0)
            pending = 4
            for c in range(4):
                for i, b in enumerate(blocks(c)):
                    pending -= 1
                    e(f"s_waitcnt lgkmcnt({pending})")
                    e(f"{SM} {accO}, {T.sub(4 * b, 4)}, {WO(b)}, {idx}")
                    if c < 3 and i == 0:
                        e(f"s_waitcnt vmcnt({2 - c})")
                        e("s_barrier")
                        rd(c + 1)
                        pending += 4
            e.nop(8)
            e(f"v_pk_add_f32 {fo[0:2]}, {accO[0:2]}, {accO[2:4]}")
            e(f"v_cmpx_o_f32 vcc, {fo[0]}, {fo[1]}")
            e(f"buffer_store_dword {fo[0]}, {cst}, {ws}, {oC} offen sc1")
            e(f"buffer_store_dword {fo[1]}, {cst}, {ws}, {oC} offen offset:256 sc1")
            if w == 2:
                stamp(6)
                if p.stamps is True:
                    e(f"s_memrealtime {tsp(11)}")
            e("s_cmp_eq_u64 exec, -1")
            e(f"s_cbranch_scc0 {L('bslow')}")
            e.label(L("bgood"))
            e(f"ds_write2st64_b32 {l4}, {fo[0]}, {fo[1]} offset0:{L_CP // 256 + 2 * (w & 1)} offset1:{L_CP // 256 + 2 * (w & 1) + 1}")
            if w == 2:
                e(f"ds_write_b32 {zr}, {zr} offset:{L_FL}")
                e.nop(p.dM)
            else:
                e(f"s_add_u32 {a1}, {rD}, {LY.RING_B - LY.RING_D}")
                e(f"buffer_store_dwordx4 {sent}, {own16}, {ws}, {rD} offen {st}")
                e(f"buffer_store_dwordx4 {sent}, {own16}, {ws}, {a1} offen {st}")
                e(f"buffer_store_dwordx4 {sent}, {ownA}, {ws}, {rA} offen {st}")
                e(f"buffer_store_dwordx4 {sent}, {ownA2}, {ws}, {rA} offen offset:1024 {st}")
            e("s_waitcnt lgkmcnt(0)")
            e("s_barrier")
            if w == 2:
                e.nop(p.nD if p.nD > 0 else 60)
                if p.nD > 0:
                    word(fbs, oFD)
                gate("s", pd, fbl, oFD, oth)
                e.nop(p.dD)
        elif w == 0:
            def poll():
                if p.csep == 4:
                    e(f"s_load_dwordx4 {cf}, {ws[0:2]}, {oFS[0]} glc")
                else:
                    for k in range(3):
                        e(f"s_load_dword {cf[k]}, {ws[0:2]}, {oFS[0]} offset:{k * p.csep} glc")
            ex = 0
            e(f"s_add_u32 {a2}, {oKM}, {LY.VM - LY.KM}")
            for c in range(4):
                e(f"s_waitcnt vmcnt({3 - c + ex})")
                e("s_barrier")
                if c == p.cann and p.xann == "v":
                    e.nop(p.dN)
                    e(f"buffer_store_dword {stv}, {fcs}, {ws}, {oFC} offen sc1")
                    ex += 1
                if c == p.fpos and p.far:
                    e(f"buffer_store_dwordx4 {Rr}, {kmst}, {ws}, {oKM} offen sc1")
                    ex += 1
                if c == p.fpos + 1 and p.far:
                    e(f"buffer_store_dword {A2[0]}, {l4}, {ws}, {a2} offen sc1")
                    e(f"buffer_store_dword {A2[2]}, {l4}, {ws}, {a2} offen offset:256 sc1")
                    ex += 2
                if c in p.pre:
                    poll()
            e(f"s_add_u32 {oKM}, {oKM}, 0x10000")
            stamp(5)
            e.label(L("cpoll"))
            poll()
            for _ in range(p.npc):
                e(f"s_min_u32 {a0}, {cf[0]}, {cf[1]}")
                e(f"s_min_u32 {a0}, {a0}, {cf[2]}")
                e(f"s_cmp_ge_u32 {a0}, {step}")
                e(f"s_cbranch_scc1 {L('cgo')}")
            e(f"s_waitcnt lgkmcnt({p.thr})")
            e(f"s_add_u32 {spin}, {spin}, 1")
            e(f"s_cmp_lt_u32 {spin}, {SPIN_MAX}")
            e(f"s_cbranch_scc1 {L('cpoll')}")
            e(f"s_branch {dead}")
            e.label(L("cgo"))
            e.nop(p.dF)
            e.label(L("bjoin"))
            e("s_barrier")
            retry_check()
            if p.far:
                e(f"s_add_u32 {a1}, {oFK[0]}, 32")
                e("s_waitcnt vmcnt(0)")
                e(f"s_atomic_umax {step}, {ws[0:2]}, {a1}")
        else:
            def announce(c):
                if c == p.cann and p.xann == "s":
                    e.nop(p.dN)
                    for k in range(3):
                        e(f"s_atomic_umax {step}, {ws[0:2]}, {oFW[k]}")
            ex = 0
            announce(-1)
            for c in range(4):
                e(f"s_waitcnt vmcnt({3 - c + ex})")
                e("s_barrier")
                announce(c)
                if c == p.fpos and p.far:
                    e.nop(2)
                    prefetch_kv()
                    ex += 4
                if c == p.fpos + 1:
                    e(f"buffer_store_dwordx4 {sent}, {cin}, {ws}, {rC} offen sc1")
                    ex += 1

            def cloads():
                for k in range(3):
                    e(f"buffer_load_dwordx4 {Cx.sub(4 * k, 4)}, {cld[k]}, {ws}, {oC} offen sc1")

            def csum(first=False):
                ex = 0
                for k in range(3):
                    e(f"s_waitcnt vmcnt({2 - k + ex})")
                    if first and p.nD == -k:
                        word(fbs, oFD)
                        ex = 1
                    src = Own if k == 0 else Cs
                    e(f"v_pk_add_f32 {Cs[0:2]}, {src[0:2]}, {Cx.sub(4 * k, 2)}")
                    e(f"v_pk_add_f32 {Cs[2:4]}, {src[2:4]}, {Cx.sub(4 * k + 2, 2)}")

            def cpack():
                e(f"v_cvt_pk_bf16_f32 {Dp[0]}, {Cs[0]}, {Cs[1]}")
                e(f"v_cvt_pk_bf16_f32 {Dp[1]}, {Cs[2]}, {Cs[3]}")

            def cstore():
                e(f"buffer_store_dwordx2 {Dp}, {dst}, {ws}, {oD} offen {st}")

            e.label(L("bjoin"))
            e("s_barrier")
            cloads()
            stamp(7)
            retry_check()
            csum(True)
            e(f"v_cmpx_o_f32 vcc, {Cs[0]}, {Cs[1]}")
            e(f"v_cmpx_o_f32 vcc, {Cs[2]}, {Cs[3]}")
            cpack()
            cstore()
            e("s_cmp_eq_u64 exec, -1")
            e(f"s_cbranch_scc0 {L('cslow')}")
            e.label(L("cgood"))
            if p.nD == -3:
                word(fbs, oFD)
            stamp(8)
        e("s_barrier")
        if w == 0:
            stamp(9)
        issue(oD)
        e(f"s_branch {L('loop')}")

        e.label(L("dslow"))
        e(f"v_max_u32 {mx}, {F[0]}, {F[1]}")
        for q in range(1, 8):
            e(f"v_max3_u32 {mx}, {mx}, {F[2 * q]}, {F[2 * q + 1]}")
        e(f"v_cmp_eq_u32 vcc, -1, {mx}")
        e(f"s_cbranch_vccz {L('dgood')}")
        e.label(L("dagain"))
        for b in order:
            load_block(b, oD)
        count_fail(0)
        zero(accP)
        spin_check()
        e("s_waitcnt vmcnt(0)")
        e(f"v_max_u32 {mx}, {F[0]}, {F[1]}")
        for q in range(1, 8):
            e(f"v_max3_u32 {mx}, {mx}, {F[2 * q]}, {F[2 * q + 1]}")
        e(f"v_cmp_eq_u32 vcc, -1, {mx}")
        e(f"s_cbranch_vccnz {L('dagain')}")
        e(f"s_branch {L('dtry')}")
        if w >= 2:
            e.label(L("bslow"))
            e("s_mov_b64 exec, -1")
            e(f"v_max_u32 {mx}, {T[0]}, {T[1]}")
            for q in range(1, 32):
                e(f"v_max3_u32 {mx}, {mx}, {T[2 * q]}, {T[2 * q + 1]}")
            e(f"v_cmp_eq_u32 vcc, -1, {mx}")
            e(f"s_cbranch_vccnz {L('bagain')}")
            e(f"buffer_store_dword {fo[0]}, {cst}, {ws}, {oC} offen sc1")
            e(f"buffer_store_dword {fo[1]}, {cst}, {ws}, {oC} offen offset:256 sc1")
            e(f"s_branch {L('bgood')}")
            e.label(L("bagain"))
            count_fail(2)
            if w == 2:
                e(f"ds_write_b32 {zr}, {sent[0]} offset:{L_FL}")
            zero(accO)
            spin_check()
            e("s_waitcnt lgkmcnt(0)")
            e("s_barrier")
            issue_out()
            e(f"s_branch {L('bwait')}")
        else:
            e.label(L("bretry"))
            spin_check()
            e(f"s_mov_b32 m0, {L_OB + 4096 * w}")
            e("s_nop 0")
            issue_out()
            chunk_barriers()
            e(f"s_branch {L('bjoin')}")
        if w == 0:
            e.label(L("abad"))
            e(f"v_max3_u32 {mx}, {XM[0]}, {XM[1]}, {XM[2]}")
            e(f"v_max_u32 {mx}, {mx}, {XM[3]}")
            for q in range(6):
                e(f"v_max3_u32 {mx}, {mx}, {X[2 * q]}, {X[2 * q + 1]}")
            e(f"v_cmp_eq_u32 vcc, -1, {mx}")
            aloads()
            count_fail(1)
            spin_check()
            e(f"s_cbranch_vccnz {L('atry')}")
            e(f"v_max3_f32 {mx}, {Sx[0]}, {Sx[1]}, {Sx[2]}")
            e(f"v_max3_f32 {mx}, {mx}, {Sx[3]}, {Sx[4]}")
            e.nop(2)
            e(f"v_max_f32_dpp {Lt}, {mx}, {mx} {DPP8}")
            e(f"v_max_f32_dpp {Lu}, {mx}, {mx} {DPP8}")
            e.nop(2)
            e(f"v_permlane16_swap_b32 {Lt}, {Lu}")
            e.nop(2)
            e(f"v_max_f32 {mx}, {Lt}, {Lu}")
            e(f"v_max_f32 {Lt}, {Lt}, {Lu}")
            e.nop(2)
            e(f"v_permlane32_swap_b32 {mx}, {Lt}")
            e.nop(2)
            e(f"v_max_f32 {mx}, {mx}, {Lt}")
            for i in range(5):
                e(f"v_sub_f32 {Sx[i]}, {Sx[i]}, {mx}")
            exps()
            e(f"s_branch {L('agood')}")
        if w == 1:
            e.label(L("cslow"))
            e("s_mov_b64 exec, -1")
            count_fail(3)
            e(f"v_max_u32 {mx}, {Cx[0]}, {Cx[1]}")
            for q in range(1, 6):
                e(f"v_max3_u32 {mx}, {mx}, {Cx[2 * q]}, {Cx[2 * q + 1]}")
            e(f"v_cmp_eq_u32 vcc, -1, {mx}")
            e(f"s_cbranch_vccz {L('cfull')}")
            cloads()
            spin_check()
            csum()
            e(f"s_branch {L('cslow')}")
            e.label(L("cfull"))
            cpack()
            cstore()
            e(f"s_branch {L('cgood')}")

        e.label(L("done"))
        if w == 0:
            publish_km()
            e("s_waitcnt vmcnt(0)")
            e(f"buffer_store_dword {stv}, {fms}, {ws}, 0 offen sc1")
        if p.stamps == "lite":
            e(f"s_memrealtime {tsp(1)}")
            e(f"s_lshl_b32 {a0}, {sx}, 5")
            e(f"s_add_u32 {a0}, {a0}, {sj}")
            e(f"s_lshl_b32 {a0}, {a0}, 7")
            e(f"s_add_u32 {a0}, {a0}, {LY.STAMPS + 32 * w}")
            e("s_waitcnt vmcnt(0) lgkmcnt(0)")
            e(f"s_sub_u32 {a1}, {tsp(1)[0]}, {tsp(0)[0]}")
            for i in range(4):
                e(f"v_mov_b32 {T[i]}, {fails[i]}")
            e(f"v_mov_b32 {T[4]}, {a1}")
            e(f"buffer_store_dwordx4 {T[0:4]}, off, {ws}, {a0}")
            e(f"buffer_store_dword {T[4]}, off, {ws}, {a0} offset:16")
        if p.stamps is True and w < 3:
            e(f"s_lshl_b32 {a0}, {sx}, 5")
            e(f"s_add_u32 {a0}, {a0}, {sj}")
            e(f"s_lshl_b32 {a0}, {a0}, 14")
            e(f"s_add_u32 {a0}, {a0}, {LY.STAMPS + 4096 * w}")
            e("s_waitcnt vmcnt(0) lgkmcnt(0)")
            for i in range(4):
                e(f"v_add_u32 {t0}, {L_ST + 8192 * w}, {l16}")
                e(f"ds_read_b128 {T.sub(4 * i, 4)}, {t0} offset:{1024 * i}")
            e("s_waitcnt lgkmcnt(0)")
            for i in range(4):
                e(f"buffer_store_dwordx4 {T.sub(4 * i, 4)}, {l16}, {ws}, {a0} offen offset:{1024 * i}")
            e("s_waitcnt vmcnt(0)")
        e(f"s_branch {dead}")
```

```python
import os, sys
from emit import Emit, Regs, R
import layout as LY
import chain
import proj
import partb

NAME = "concat_heads__memory_aug_recurrent_mem_tr__ssm_conv_s4__prompt"
LDS = 153600
READY = 32
READY_SAFE = 48


def build(p, par=None, roles="CKVQO"):
    nready = 128 * ("C" in roles) + 32 * sum(r in roles for r in "KVQO")
    e = Emit()
    s = Regs("s", 4, 102)
    S = {"alloc": s}
    S["ws"] = ws = s.alloc("ws", 4, 4)
    S["tsrd"] = s.alloc("tsrd", 4, 4)
    S["dbg"] = dbg = s.alloc("dbg", 4, 4)
    S["wptr"] = s.alloc("wptr", 8, 4)
    S["x"], S["j"], S["w"], S["par"], S["cu"], safe, rdy = (s.alloc(n) for n in "x j w par cu safe rdy".split())
    tm = s.alloc("tm", 3) if p.times else None
    tmp = s.alloc("tmp", 2, 2)
    vote = s.alloc("vote", 2, 2)
    S["exit"] = "L_done"
    S["calibrate"] = par is None
    S["prof"] = p.dbg == "pro"
    TK = LDS - 64

    def cast_vote(e, c):
        if par is not None:
            return
        l = e.new_label("voted")
        e(f"s_cmp_lg_u32 {S['w']}, 1")
        e(f"s_cbranch_scc1 {l}")
        e(f"s_lshl_b32 {c[0]}, 1, {S['x']}")
        e(f"s_and_b32 {c[0]}, {c[0]}, {sum(16 << p.place.index(r) for r in 'QO')}")
        e(f"s_cbranch_scc0 {l}")
        e(f"s_bfe_u32 {c[8]}, s2, 0x30003")
        e(f"s_lshl_b32 {c[0]}, {c[8]}, 21")
        e(f"s_lshr_b32 {c[1]}, s2, 6")
        e(f"s_lshl_b32 {c[1]}, {c[1]}, 3")
        e(f"s_and_b32 {c[2]}, s2, 7")
        e(f"s_add_u32 {c[1]}, {c[1]}, {c[2]}")
        e(f"s_lshl_b32 {c[1]}, {c[1]}, 8")
        e(f"s_add_u32 {c[0]}, {c[0]}, {c[1]}")
        e(f"s_add_u32 {c[0]}, {c[0]}, {LY.RING_C + (6 << 18)}")
        e(f"s_mov_b64 {c[6:8]}, -1")
        e(f"s_mov_b32 {c[9]}, 0")
        e("s_waitcnt lgkmcnt(0)")
        e.label(l + "_l")
        e(f"s_memtime {c[2:4]}")
        e(f"s_load_dword {c[1]}, {ws[0:2]}, {c[0]} glc")
        e("s_waitcnt lgkmcnt(0)")
        e(f"s_memtime {c[4:6]}")
        e(f"s_xor_b32 {c[0]}, {c[0]}, 8192")
        e("s_waitcnt lgkmcnt(0)")
        e(f"s_sub_u32 {c[2]}, {c[4]}, {c[2]}")
        e(f"s_min_u32 {c[2]}, {c[2]}, {c[6]}")
        e(f"s_mov_b32 {c[6]}, {c[7]}")
        e(f"s_mov_b32 {c[7]}, {c[2]}")
        e(f"s_add_u32 {c[9]}, {c[9]}, 1")
        e(f"s_cmp_lt_u32 {c[9]}, 8")
        e(f"s_cbranch_scc1 {l}_l")
        e(f"s_cmp_lt_u32 {c[6]}, {c[7]}")
        e(f"s_cselect_b32 {c[2]}, 1, 0")
        e(f"s_xor_b32 {c[2]}, {c[2]}, {c[8]}")
        e(f"s_bitcmp1_b32 {c[2]}, 0")
        e(f"s_cselect_b32 {vote[1]}, 0x10000, 1")
        e.label(l)

    e("s_cmp_ge_u32 s2, 256")
    e("s_cbranch_scc1 L_exit")
    if p.times:
        e(f"s_memrealtime {vote}")
    e(f"s_load_dwordx2 {ws[0:2]}, s[0:1], 144")
    e(f"s_load_dwordx2 {dbg[0:2]}, s[0:1], 136")
    e(f"s_load_dwordx8 {S['wptr']}, s[0:1], 16")
    partb.emit_pointers(e)
    e(f"s_getreg_b32 {S['x']}, hwreg(HW_REG_XCC_ID, 0, 4)")
    e("v_lshrrev_b32 v1, 6, v0")
    e(f"s_mov_b32 {ws[2]}, {LY.WS_RECORDS:#x}")
    e(f"s_mov_b32 {ws[3]}, 0x20000")
    e(f"v_readfirstlane_b32 {S['w']}, v1")
    e(f"s_mov_b32 {dbg[2]}, 256")
    e(f"s_mov_b32 {dbg[3]}, 0x20000")
    e(f"s_mov_b32 {S['par']}, {0 if par is None else (0xaa if par == 0 else 0x55)}")
    e(f"s_mov_b32 {safe}, 0")
    e(f"s_mov_b32 {rdy}, {READY}")
    e(f"s_and_b32 {tmp[0]}, s2, 7")
    e(f"s_lshl_b32 {tmp[0]}, {tmp[0]}, 5")
    e(f"s_lshr_b32 {S['cu']}, s2, 3")
    e(f"s_add_u32 {S['cu']}, {S['cu']}, {tmp[0]}")
    e("s_waitcnt lgkmcnt(0)")
    if p.times:
        e(f"s_mov_b32 {tm[0]}, {vote[0]}")
    e(f"s_add_u32 {ws[0]}, {ws[0]}, 0x1fffff")
    e(f"s_addc_u32 {ws[1]}, {ws[1]}, 0")
    e(f"s_and_b32 {ws[0]}, {ws[0]}, 0xffe00000")
    e(f"v_mov_b32 v2, {TK}")
    e(f"s_mov_b64 {vote}, 1")
    e(f"s_cmp_lg_u32 {S['w']}, 0")
    e("s_cbranch_scc1 L_start")
    e(f"s_and_b32 {tmp[0]}, {S['x']}, 3")
    e(f"s_lshl_b32 {tmp[0]}, {tmp[0]}, 6")
    e(f"s_and_b32 {tmp[1]}, {S['x']}, 12")
    e(f"s_add_u32 {tmp[0]}, {tmp[0]}, {tmp[1]}")
    e(f"v_mov_b32 v3, {tmp[0]}")
    e("v_mov_b32 v4, 1")
    e("s_mov_b64 exec, 1")
    e(f"buffer_atomic_add v4, v3, {dbg}, 0 offen sc0 sc1")
    e("s_mov_b64 exec, -1")
    e.label("L_start")
    partb.emit_loads(e, S)
    e(f"s_cmp_eq_u32 {safe}, 1")
    e("s_cbranch_scc1 L_dispatch")
    e(f"s_cmp_lg_u32 {S['w']}, 0")
    e("s_cbranch_scc1 L_notfirst")
    e(f"s_waitcnt vmcnt({len(partb.LOAD_TAGS)})")
    e("s_mov_b64 exec, 1")
    e("ds_write_b32 v2, v4")
    e("s_mov_b64 exec, -1")
    e.label("L_notfirst")
    cast_vote(e, R("s", 56, 10))
    e("s_waitcnt lgkmcnt(0)")
    e("s_barrier")
    e("ds_read_b32 v4, v2")
    e("s_waitcnt lgkmcnt(0)")
    e(f"v_readfirstlane_b32 {S['j']}, v4")


    def arrive(e, vq, vm=None):
        e(f"v_mov_b32 {vq[0]}, {vote[0]}")
        e(f"v_mov_b32 {vq[1]}, {vote[1]}")
        e(f"v_bfrev_b32 {vq[2]}, 1")
        e(f"v_cmp_eq_u32 vcc, 64, v0")
        e.nop(2)
        e(f"v_cndmask_b32 {vq[2]}, {vq[2]}, 0, vcc")
        op = f"buffer_atomic_add_x2 {vq[0:2]}, {vq[2]}, {dbg}, {rdy} offen sc1"
        vm.op("sig", op) if vm else e(op)

    def wait_ready(e, vq, need_par=False):
        l = e.new_label("rdy")
        e(f"s_mov_b32 s3, 0")
        e.label(l)
        e(f"buffer_load_dwordx4 {vq}, off, {dbg}, {rdy} sc1")
        e(f"s_add_u32 s3, s3, 1")
        e(f"s_cmp_gt_u32 s3, {chain.SPIN_MAX}")
        e("s_cbranch_scc1 L_exit")
        e("s_waitcnt vmcnt(0)")
        e(f"v_readfirstlane_b32 {tmp[0]}, {vq[0]}")
        e(f"v_readfirstlane_b32 {tmp[1]}, {vq[1]}")
        e(f"v_readfirstlane_b32 vcc_hi, {vq[2]}")
        e(f"s_and_b32 vcc_lo, {tmp[0]}, 0xffff")
        e(f"s_cmp_lt_u32 vcc_lo, {nready}")
        e(f"s_cbranch_scc1 {l}")
        e("s_cmp_lg_u32 vcc_hi, 0")
        e("s_cbranch_scc1 L_general")
        if need_par:
            e(f"s_lshr_b32 vcc_lo, {tmp[1]}, 16")
            e(f"s_and_b32 vcc_hi, {tmp[1]}, 0xffff")
            e("s_cmp_gt_u32 vcc_lo, vcc_hi")
            e(f"s_cselect_b32 {S['par']}, 0, 1")
            e(f"s_lshl_b32 {S['par']}, 0x55, {S['par']}")
        if p.times:
            e(f"s_memrealtime {tmp}")
            e(f"s_memtime vcc")
            e("s_waitcnt lgkmcnt(0)")
            e(f"s_mov_b32 {tm[1]}, {tmp[0]}")
            e(f"s_mov_b32 {tm[2]}, vcc_lo")

    S["signal_ready"] = arrive
    S["wait_ready"] = wait_ready

    e(f"s_cmp_ge_u32 {S['j']}, {0 if p.force_general == 2 else 32 - p.force_general}")
    e("s_cbranch_scc1 L_odd")
    e(f"s_cmp_lt_u32 {S['x']}, 8")
    e("s_cbranch_scc1 L_dispatch")
    e.label("L_odd")
    e("v_mov_b32 v4, 1")
    e(f"buffer_store_dword v4, off, {dbg}, {rdy} offset:8 sc1")
    e("s_waitcnt vmcnt(0)")
    arrive(e, R("v", 4, 4))
    wait_ready(e, R("v", 8, 4))
    e.label("L_general")
    e("s_waitcnt vmcnt(0) lgkmcnt(0)")
    e("s_barrier")
    e(f"s_mov_b32 {safe}, 1")
    e(f"s_mov_b32 {rdy}, {READY_SAFE}")
    e(f"s_mov_b32 {S['par']}, 0")
    e(f"s_lshr_b32 {S['x']}, s2, 5")
    e(f"s_and_b32 {S['j']}, s2, 31")
    e(f"s_add_u32 {ws[0]}, {ws[0]}, 0x200000")
    e(f"s_addc_u32 {ws[1]}, {ws[1]}, 0")
    partb.emit_pointers(e)
    e("s_waitcnt lgkmcnt(0)")
    e("s_branch L_start")
    e.label("L_dispatch")
    mark = s.next
    for i, r in enumerate(p.place):
        e(f"s_cmp_eq_u32 {S['x']}, {4 + i}")
        e(f"s_cbranch_scc1 {'L_role_' + r if r in roles else 'L_exit'}")
    if "C" in roles:
        e(f"s_cmp_eq_u32 {safe}, 1")
        e("s_cbranch_scc1 L_role_G")
        chain.emit_chain(e, S, p, "", "cf")
    e.label("L_done")
    if p.times:
        e(f"s_memrealtime {vote}")
        e(f"s_memtime vcc")
        e(f"s_lshl_b32 {tmp[0]}, {S['x']}, 5")
        e(f"s_add_u32 {tmp[0]}, {tmp[0]}, {S['j']}")
        e(f"s_lshl_b32 {tmp[0]}, {tmp[0]}, 2")
        e(f"s_add_u32 {tmp[0]}, {tmp[0]}, {S['w']}")
        e(f"s_lshl_b32 {tmp[0]}, {tmp[0]}, 4")
        e(f"s_add_u32 {tmp[0]}, {tmp[0]}, {LY.TIMES}")
        e("s_mov_b64 exec, -1")
        e("s_waitcnt lgkmcnt(0) vmcnt(0)")
        e("v_mov_b32 v1, 0")
        e(f"s_sub_u32 {tm[2]}, vcc_lo, {tm[2]}")
        for i, r in enumerate((tm[0], tm[1], vote[0], tm[2])):
            e(f"v_mov_b32 v{2 + i}, {r}")
        e(f"buffer_store_dwordx4 v[2:5], v1, {ws}, {tmp[0]} offen")
        if S["prof"]:
            e(f"s_sub_u32 {tmp[0]}, {tmp[0]}, {LY.TIMES}")
            e(f"s_lshl_b32 {tmp[0]}, {tmp[0]}, 4")
            e("v_and_b32 v1, 63, v0")
            e("v_lshlrev_b32 v1, 2, v1")
            e(f"buffer_store_dword v254, v1, {ws}, {tmp[0]} offen")
    e.label("L_exit")
    e("s_endpgm")
    for r in "KVQO":
        if r in roles:
            s.next = mark
            e.label("L_role_" + r)
            proj.emit_proj(e, S, p, r, "r" + r)
    if "C" in roles:
        s.next = mark
        e.label("L_role_G")
        chain.emit_chain(e, S, p, "sc1", "cg")

    head = open(os.path.join(os.path.dirname(os.path.abspath(__file__)), "..", NAME + ".s.ref")).read().split("; Override launch")[0]
    return f"""{head}; @launch grid=(256,1,1) block=(256,1,1) lds={LDS}
.amdgcn_target "amdgcn-amd-amdhsa--gfx950"
.text
.globl {NAME}_kernel
.p2align 8
.type {NAME}_kernel,@function
{NAME}_kernel:
{e.text()}
.section .rodata,"a"
.p2align 6
.amdhsa_kernel {NAME}_kernel
  .amdhsa_next_free_vgpr 512
  .amdhsa_next_free_sgpr 102
  .amdhsa_accum_offset 256
  .amdhsa_group_segment_fixed_size 0
  .amdhsa_kernarg_size 152
  .amdhsa_user_sgpr_count 2
  .amdhsa_user_sgpr_kernarg_segment_ptr 1
  .amdhsa_system_sgpr_workgroup_id_x 1
  .amdhsa_float_denorm_mode_32 3
.end_amdhsa_kernel
"""


if __name__ == "__main__":
    sys.stdout.write(build(chain.P()))
```

```python
import sys, os
import numpy as np
sys.path.insert(0, "dev")
ON_GPU = os.path.exists("/dev/kfd")
import mb

def gen(flag, mode):
    L = []; a = L.append
    a("s_load_dwordx4 s[4:7], s[0:1], 0")
    a("s_load_dwordx2 s[8:9], s[0:1], 16")
    a("s_waitcnt lgkmcnt(0)")
    a("s_load_dword s12, s[6:7], 0")
    a("s_mov_b32 s40, s4"); a("s_mov_b32 s41, s5"); a("s_mov_b32 s42, 0x10000000"); a("s_mov_b32 s43, 0x20000")
    a("s_waitcnt lgkmcnt(0)")
    if mode == "one":
        a("s_lshl_b32 s30, s2, 20"); a("s_lshl_b32 s31, s12, 7")
    else:
        a("s_lshr_b32 s31, s2, 6"); a("s_lshl_b32 s31, s31, 3"); a("s_and_b32 s30, s2, 7"); a("s_add_u32 s30, s30, s31")
        a("s_lshl_b32 s30, s30, 20"); a("s_bfe_u32 s31, s2, 0x30003"); a("s_lshl_b32 s31, s31, 7")
    a("s_add_u32 s30, s30, s31")
    a("v_lshrrev_b32 v10, 3, v0"); a("v_lshlrev_b32 v10, 10, v10"); a("v_and_b32 v11, 7, v0"); a("v_lshl_add_u32 v10, v11, 4, v10")
    a("s_memrealtime s[18:19]")
    for i in range(32):
        a(f"buffer_load_dwordx4 v[20:23], v10, s[40:43], s30 offen {flag}")
        a("s_add_u32 s30, s30, 0x8000")
    a("s_waitcnt vmcnt(0)")
    a("s_barrier")
    a("s_memrealtime s[22:23]")
    a("s_waitcnt lgkmcnt(0)")
    a("s_sub_u32 s22, s22, s18")
    a("s_lshl_b32 s15, s2, 2")
    a("v_mov_b32 v3, s15"); a("v_mov_b32 v4, s22")
    a("global_store_dword v3, v4, s[8:9]")
    a("s_waitcnt vmcnt(0)")
    a("s_endpgm")
    return mb.wrap("c_kernel", "\n".join(L), vgpr=128, grid=256, block=256, lds=131072)

_b = []
for flag in ("", "nt"):
    for mode in ("one", "mix"):
        co = mb.build(gen(flag, mode), "c_kernel", 3)
        if not ON_GPU: continue
        k = mb.load(co, "c_kernel")
        if not _b: _b.extend([mb.cl.DeviceBuffer(256 << 20), mb.cl.DeviceBuffer(512 << 20), mb.cl.DeviceBuffer(512 << 20)])
        out = mb.cl.DeviceBuffer(4096)
        for fl in ("memset", "copy"):
            r = []
            for c in range(8 if mode == "one" else 2):
                par = mb.cl.DeviceBuffer.from_numpy(np.array([c], np.uint32))
                if fl == "memset": mb.memset(_b[1], 1)
                else: mb.cl.hip_check(mb.cl._hip.hipMemcpy(_b[1]._ptr, _b[2]._ptr, 512 << 20, 3))
                mb.sync()
                k.launch((256, 1, 1), (256, 1, 1), mb.args(_b[0], par, out), 131072); mb.sync()
                o = out.to_numpy(np.uint32, (256,)) / 100
                r.append(f"{o.mean():.1f}" if mode == "one" else str(np.round(o.reshape(4, 8, 8).mean((0, 2)), 1)))
            print(f"flag='{flag}' mode={mode} flush={fl}:", " ".join(r), flush=True)
        k.unload()
```
